```python
import torch

def _softmax(x, axis=-1):
    return torch.softmax(x, dim=axis)
def _gelu(x):
    return torch.nn.functional.gelu(x, approximate="tanh")
def _silu(x):
    return torch.nn.functional.silu(x)
def _sigmoid(x):
    return torch.sigmoid(x)
def _layernorm(x, axis=-1, eps=1e-5):
    m = x.mean(dim=axis, keepdim=True)
    v = x.var(dim=axis, keepdim=True, unbiased=False)
    return (x - m) / torch.sqrt(v + eps)
def _scatter_add(tgt, idx, src, axis=0):
    return tgt.clone().index_add_(axis, idx, src)
def _segment_sum(src, seg, n):
    out = torch.zeros((n,) + src.shape[1:], dtype=src.dtype)
    return out.index_add_(0, seg, src)
def _pad(x, pw):
    flat = tuple(v for pair in reversed(pw) for v in pair)
    return torch.nn.functional.pad(x, flat)

kernel_name = 'recurrent_scan__gqa_block_cached__glu_gated_swiglu__decode'

def setup_inputs():

    _w = (lambda a: (lambda t: t.to(torch.bfloat16) if t.is_floating_point() else t)(torch.as_tensor(a)))
    def _A_setup():
        B, Sq, D = 1, 1, 512
        Hq, Hkv, Sk, Dh = 32, 8, 65536, 128
        assert Hq % Hkv == 0, (Hq, Hkv)
        return {
            "x": _w((lambda *s: torch.randn(*s, dtype=torch.bfloat16) * 0.4)(B, Sq, D)),
            "k_cache": _w((lambda *s: torch.randn(*s, dtype=torch.bfloat16) * 1.6)(B, Hkv, Sk, Dh)),
            "v_cache": _w((lambda *s: torch.randn(*s, dtype=torch.bfloat16) * 1.6)(B, Hkv, Sk, Dh)),
            "wq": _w((lambda *s: torch.randn(*s, dtype=torch.bfloat16) * 1.6)(D, Hq * Dh) * (D ** -0.5)),
            "wo": _w((lambda *s: torch.randn(*s, dtype=torch.bfloat16) * 1.6)(Hq * Dh, D) * ((Hq * Dh) ** -0.5)),
        }
    _A_in = _A_setup()

    def _B_setup():
        B, S, D, F = 1, 1, 512, 1792
        return {
            "x": _w((lambda *s: torch.randn(*s, dtype=torch.bfloat16) * 0.4)(B, S, D)),
            "w1": _w((lambda *s: torch.randn(*s, dtype=torch.bfloat16) * 1.6)(D, F) * (2.0 / D) ** 0.5),
            "w3": _w((lambda *s: torch.randn(*s, dtype=torch.bfloat16) * 1.6)(D, F) * (2.0 / D) ** 0.5),
            "w2": _w((lambda *s: torch.randn(*s, dtype=torch.bfloat16) * 1.6)(F, D) * (2.0 / F) ** 0.5),
        }
    _B_in = _B_setup()

    return {
        "A_x": _A_in["x"],
        "A_k_cache": _A_in["k_cache"],
        "A_v_cache": _A_in["v_cache"],
        "A_wq": _A_in["wq"],
        "A_wo": _A_in["wo"],
        "B_x": _B_in["x"],
        "B_w1": _B_in["w1"],
        "B_w3": _B_in["w3"],
        "B_w2": _B_in["w2"],
    }

def reference(A_x, A_k_cache, A_v_cache, A_wq, A_wo, B_x, B_w1, B_w3, B_w2):
    def _A_ref(x, k_cache, v_cache, wq, wo):
        B, Sq, D = x.shape
        Hq, Dh = 32, 128
        Hkv = k_cache.shape[1]
        rep = Hq // Hkv
        q = (lambda x, *d: x.permute(*d))((x @ wq).reshape(B, Sq, Hq, Dh), 0, 2, 1, 3)
        k = (lambda x, n, axis: torch.repeat_interleave(x, n, dim=axis))(k_cache, rep, axis=1)
        v = (lambda x, n, axis: torch.repeat_interleave(x, n, dim=axis))(v_cache, rep, axis=1)
        scores = torch.einsum("bhqd,bhkd->bhqk", q, k) * (Dh ** -0.5)
        p = _softmax(scores, axis=-1)
        o = torch.einsum("bhqk,bhkd->bhqd", p, v)
        return (lambda x, *d: x.permute(*d))(o, 0, 2, 1, 3).reshape(B, Sq, Hq * Dh) @ wo

    def _B_ref(x, w1, w3, w2):
        gate = torch.einsum("bsd,df->bsf", x, w1)
        up = torch.einsum("bsd,df->bsf", x, w3)
        h = _silu(gate) * up
        out = torch.einsum("bsf,fd->bsd", h, w2)
        return out

    x = A_x
    xn = _layernorm(x, axis=-1)
    s = _A_ref(xn, A_k_cache, A_v_cache, A_wq, A_wo)
    g = _silu(_B_ref(xn, B_w1, B_w3, B_w2))
    return x + s * g
```

```python
import re, struct
def f2u(x): return struct.unpack("<I", struct.pack("<f", x))[0]
def fhex(x): return f"0x{f2u(x):08x}"

REG = re.compile(r"^(-?)(abs\()?([vas])(\d+|\[(\d+):(\d+)\])\)?$")
def regs_of(tok):
    tok = tok.strip()
    if tok in ("vcc", "vcc_lo", "vcc_hi"): return {("s", "vcc")}
    if tok in ("exec", "exec_lo", "exec_hi"): return {("s", "exec")}
    if tok == "m0": return {("s", "m0")}
    m = REG.match(tok)
    if not m: return set()
    k = m.group(3)
    if m.group(5) is not None: r = range(int(m.group(5)), int(m.group(6)) + 1)
    else: r = [int(m.group(4))]
    return {(k, i) for i in r}
TRANS = ("v_exp_f32", "v_log_f32", "v_rcp_f32", "v_rsq_f32", "v_sqrt_f32", "v_sin_f32", "v_cos_f32")
class Ins:
    def __init__(s, text):
        s.text = text
        t = text.split(";")[0].strip()
        s.label = t[:-1] if t.endswith(":") else None
        s.directive = t.startswith(".")
        parts = t.split(None, 1)
        s.op = parts[0] if parts else ""
        ops = []
        if len(parts) > 1:
            ops = [o.strip() for o in re.split(r",\s*(?![^\[]*\])", parts[1])]
            if ops:
                last = ops[-1].split()
                ops[-1] = last[0]; s.mods = " ".join(last[1:])
        s.mods = getattr(s, "mods", "")
        s.ops = ops
        op = s.op
        s.valu = op.startswith("v_") and not op.startswith("v_mfma")
        s.mfma = op.startswith("v_mfma")
        s.vmem = op.startswith(("buffer_", "global_"))
        s.ds = op.startswith("ds_")
        s.salu = op.startswith("s_")
        s.dpp = "_dpp" in op or "row_" in s.mods or "quad_perm" in s.mods
        s.trans = op.replace("_e32", "").replace("_e64", "").replace("_dpp", "") in TRANS
        s.dot = op.startswith("v_dot")
        s.perml = op.startswith("v_permlane")
        s.lane = op.startswith(("v_readlane", "v_readfirstlane", "v_writelane"))
        R = [regs_of(o) for o in ops]
        U = lambda l: set().union(*l) if l else set()
        s.defs, s.uses = set(), set()
        if s.label or s.directive or not op: return
        if s.mfma:
            s.defs = R[0]; s.a = R[1]; s.b = R[2]; s.c = R[3]; s.uses = U(R[1:])
            s.passes = 8 if "32x32" in op else 4
        elif s.perml: s.defs = U(R); s.uses = U(R)
        elif s.valu:
            s.defs = set(R[0]); s.uses = U(R[1:])
            if "_co_" in op: s.defs |= R[1]; s.uses = U(R[2:])
            if op.startswith(("v_fmac", "v_dot2c", "v_writelane")) or s.dpp: s.uses |= R[0]
            if op.startswith("v_cndmask") and len(ops) == 3: s.uses |= {("s", "vcc")}
        elif s.vmem:
            if "load" in op and " lds" not in " " + s.mods: s.defs = R[0]; s.uses = U(R[1:])
            elif "atomic" in op:
                s.uses = U(R); s.defs = R[0] if "sc0" in s.mods else set()
            else: s.uses = U(R)
            s.wide_store = "store" in op and ("x3" in op or "x4" in op)
            s.data = R[0] if op.startswith("buffer_store") else (R[1] if op.startswith("global_store") else set())
        elif s.ds:
            if "read" in op or "permute" in op or "swizzle" in op: s.defs = R[0]; s.uses = U(R[1:])
            else: s.uses = U(R)
        elif s.salu:
            if op.startswith(("s_cmp", "s_cbranch", "s_branch", "s_waitcnt", "s_nop", "s_barrier", "s_endpgm", "s_sleep", "s_setprio", "s_bitcmp", "s_setpc")):
                s.uses = U(R)
            else:
                s.defs = set(R[0]) if R else set(); s.uses = U(R[1:])
                if "saveexec" in op: s.defs |= {("s", "exec")}
    def states(s):
        if s.label or s.directive or not s.op: return 0
        if s.op == "s_nop": return int(s.ops[0], 0) + 1
        return 1
def isv(r): return r[0] in "va"
def need(p, c):
    n = 0
    pd = p.defs
    if p.valu:
        vd = {r for r in pd if isv(r)}; sd = {r for r in pd if not isv(r)}
        if vd & c.uses:
            if c.dpp or c.perml or c.mfma: n = max(n, 2)
            if c.op.startswith(("v_readlane", "v_readfirstlane")): n = max(n, 1)
            if p.trans and c.valu and not c.trans: n = max(n, 1)
            if p.trans and (c.vmem or c.ds): n = max(n, 1)
        if p.dot and (vd & (c.uses | c.defs)):
            if c.op == p.op:
                srcc = regs_of(c.ops[3]) if len(c.ops) > 3 else regs_of(c.ops[0])
                ab = set().union(*[regs_of(o) for o in c.ops[1:3]])
                if vd & ab: n = max(n, 3)
            else: n = max(n, 3)
        if sd & c.uses:
            if c.vmem: n = max(n, 5)
            if c.lane and len(c.ops) > 2 and (sd & regs_of(c.ops[2])): n = max(n, 4)
            if c.valu or c.mfma: n = max(n, 2)
            if c.salu: n = max(n, 1)
        if ("s", "exec") in sd and (c.dpp): n = max(n, 5)
        if ("s", "exec") in sd and (c.mfma or c.perml or c.lane): n = max(n, 4)
    if p.mfma:
        big = {4: 8, 8: 12}[p.passes]
        if c.mfma:
            if pd & (c.a | c.b): n = max(n, big)
            if pd & c.c and not (pd == c.c and c.op == p.op): n = max(n, big - 2)
            if pd & c.defs and not (pd == c.defs and pd == c.c and c.op == p.op): n = max(n, big - 2)
        elif (c.valu or c.vmem or c.ds) and (pd & (c.uses | c.defs)): n = max(n, big)
        if c.valu and (p.c & c.defs): n = max(n, {4: 3, 8: 7}[p.passes])
    if p.vmem and getattr(p, "wide_store", False) and (p.data & c.defs): n = max(n, 2)
    if p.salu and ("s", "m0") in pd and (c.vmem and "lds" in c.mods): n = max(n, 1)
    if p.salu and ("s", "m0") in pd and c.lane: n = max(n, 1)
    return n
class Asm:
    def __init__(s): s.L = []
    def __call__(s, text):
        for t in text.split("\n"):
            t = t.strip()
            if t: s.L.append(t)
    def pad(s, W=24):
        ins = [Ins(t) for t in s.L]
        NOFALL = ("s_branch", "s_endpgm", "s_setpc")
        for k, i in enumerate(ins):
            i.prev = ins[k - 1] if k else None; i.jp = []
        lab = {i.label: i for i in ins if i.label}
        rets = [i for i in ins if i.op.startswith("s_setpc")]
        for k, i in enumerate(ins):
            if i.op.startswith(("s_cbranch", "s_branch", "s_call")):
                assert i.ops[-1] in lab, i.text
                lab[i.ops[-1]].jp.append(i)
            if i.op.startswith("s_call"): ins[k + 1].jp.extend(rets)
        def starts(node):
            r = list(node.jp)
            if node.prev is not None and not node.prev.op.startswith(NOFALL): r.append(node.prev)
            return r
        out = []
        for c in ins:
            if c.op and not c.label and not c.directive and c.op != "s_nop":
                best = 0; seen = {}
                stack = [(p, 0) for p in starts(c)]
                while stack:
                    p, d = stack.pop()
                    if d >= W or seen.get(id(p), 1 << 30) <= d: continue
                    seen[id(p)] = d
                    if p.op and not p.label and not p.directive: best = max(best, need(p, c) - d)
                    nd = d + p.states()
                    stack.extend((q, nd) for q in starts(p))
                while best > 0:
                    n = min(best, 16); nop = Ins(f"s_nop {n-1}")
                    nop.prev = c.prev; nop.jp = c.jp; c.jp = []; c.prev = nop
                    out.append(nop); best -= n
            out.append(c)
        s.L = [i.text for i in out]
    def text(s): return "\n".join(s.L) + "\n"
```

```python
import sys
from asmlib import *
KN = "recurrent_scan__gqa_block_cached__glu_gated_swiglu__decode"
QP, TK, NON, GA, H1, H2, DBG = 0x0, 0x20000, 0x28000, 0x30000, 0x100000, 0x200000, 0x400000
XN, QL, NL, HL, GL, F2, MLB, OB = 0, 1024, 2048, 2064, 2192, 2304, 2560, 2688
OBS = 2112
LDS_BYTES = OB + 3 * OBS
SPIN = 1 << 20
FULL = "row_mask:0xf bank_mask:0xf"

def gen(P=7, D=11, DP=9, dbg=False, E=3, ipt=4, startbar=True, gsleep=16, GR=8, gprio=1, prepoll=True):
    a = Asm()
    hdr = open("cdna_kernels/" + KN + ".s.ref").read().split("; Override launch")[0]
    a.L += hdr.rstrip().split("\n")
    a(f"; @launch grid=(256,1,1) block=(256,1,1) lds={LDS_BYTES}")
    a('.amdgcn_target "amdgcn-amd-amdhsa--gfx950"\n.text')
    a(f".globl {KN}_kernel\n.p2align 8\n.type {KN}_kernel,@function\n{KN}_kernel:")
    sK, sV, sW, sO = "s[8:11]", "s[12:15]", "s[16:19]", "s[20:23]"
    sQ, sX, sY, s1, s3_, s2_ = "s[24:27]", "s[32:35]", "s[36:39]", "s[40:43]", "s[44:47]", "s[48:51]"
    X_, A_, H_, SUB, J_, WP, POOL, FIN, _u, TKT = ("s%d" % i for i in range(52, 62))
    AD = ["s28", "s29"]
    CUR = "s30"
    CTR, RET = "s[62:63]", "s[64:65]"
    T0, T1, T2, T3 = "s66", "s67", "s68", "s69"
    SELL, SELH, SCALE, LOG2E, SPN, ROLE = "s70", "s71", "s72", "s73", "s74", "s75"
    VDBG = "v3"
    def stamp(k):
        if dbg: a(f"s_memrealtime s[98:99]\ns_waitcnt lgkmcnt(0)\nv_writelane_b32 {VDBG}, s98, {k}")
    a("s_cmp_ge_u32 s2, 256\ns_cbranch_scc1 L_end")
    if dbg: a("s_memrealtime s[96:97]")
    for base, off in ((8, 8), (12, 16), (24, 24), (32, 0), (16, 88), (20, 32), (36, 72), (40, 48), (44, 56), (48, 64)):
        a(f"s_load_dwordx2 s[{base}:{base+1}], s[0:1], {off}")
    a("v_lshrrev_b32 v1, 6, v0\nv_and_b32 v0, 63, v0\nv_readfirstlane_b32 s3, v1")
    for base, n in ((8, 0x8000000), (12, 0x8000000), (16, 0x20000000), (20, 0x400000), (24, 0x400000), (32, 1024), (36, 1024), (40, 512*3584), (44, 512*3584), (48, 1792*1024)):
        a(f"s_mov_b32 s{base+2}, {hex(n)}\ns_mov_b32 s{base+3}, 0x20000")
    a(f"s_and_b32 {X_}, s2, 7\ns_lshr_b32 {A_}, s2, 3\ns_and_b32 {H_}, {A_}, 7\ns_lshr_b32 {SUB}, {A_}, 3")
    a(f"s_lshl_b32 {J_}, {SUB}, 3\ns_add_u32 {J_}, {J_}, {X_}\ns_lshl_b32 {WP}, {H_}, 5\ns_add_u32 {WP}, {WP}, {J_}")
    a(f"s_mov_b32 {SELL}, 0x05040100\ns_mov_b32 {SELH}, 0x07060302\ns_mov_b32 {SCALE}, {fhex(128**-0.5)}\ns_mov_b32 {LOG2E}, {fhex(1.4426950408889634)}")
    if dbg: a(f"v_mov_b32 {VDBG}, 0")
    def roles():
        a(f"s_sub_u32 {T0}, {X_}, {A_}\ns_and_b32 {T0}, {T0}, 7\ns_lshl_b32 {T1}, {A_}, 1\ns_add_u32 {T2}, {T1}, 1")
        a(f"s_cmp_eq_u32 {T0}, 4\ns_cselect_b32 {FIN}, {T1}, -1\ns_cmp_eq_u32 {T0}, 2\ns_cselect_b32 {FIN}, {T2}, {FIN}")
        a(f"s_cmp_eq_u32 {T0}, 0\ns_cselect_b32 {ROLE}, 1, 0\ns_cmp_lt_u32 {A_}, 28\ns_cselect_b32 {ROLE}, {ROLE}, 0")
    a("s_cmp_eq_u32 s3, 0\ns_cbranch_scc1 L_service")

    vKO, vVO, vQ = "v1", "v2", 4
    vM, vML, vL, vS, vT = "v8", "v9", "v10", "v11", ["v12", "v13", "v14", "v15"]
    vB, vD, vA, vOc, vV0 = 16, 20, 36, 52, 84
    kreg = lambda slot, i: f"a[{16*slot+4*i}:{16*slot+4*i+3}]"
    vreg = lambda slot, i: vV0 + 16 * slot + 4 * i
    a(f"s_lshl_b32 {POOL}, {H_}, 24\ns_lshl_b32 {T0}, {SUB}, 22\ns_add_u32 {POOL}, {POOL}, {T0}")
    a(f"s_mul_i32 {T0}, {X_}, 3\ns_add_u32 {T0}, {T0}, s3\ns_sub_u32 {T0}, {T0}, 1\ns_lshl_b32 {T0}, {T0}, 12\ns_add_u32 {CUR}, {POOL}, {T0}")
    a(f"v_lshrrev_b32 v12, 4, v0\nv_lshlrev_b32 v12, 6, v12\nv_bfe_u32 v13, v0, 2, 2\nv_and_b32 v14, 3, v0\nv_lshl_add_u32 v12, v13, 8, v12\nv_lshl_add_u32 {vKO}, v14, 4, v12\nv_lshlrev_b32 {vVO}, 4, v0")
    TSTEP = 24 * 4096
    S0 = P + E
    LA = 1 if D <= 8 else 2
    NS = S0 + LA
    perm = [None] * P
    perm[S0 % P] = 0; perm[(S0 + 1) % P] = 1
    fr = iter(range(2, P))
    perm = [p if p is not None else next(fr) for p in perm]
    slot_of = lambda t: perm[t % P]
    assert E <= P - 2 or P == 2
    def issue(slot, i, soff):
        if i < 4: a(f"buffer_load_dwordx4 {kreg(slot, i)}, {vKO}, {sK}, {soff} offen offset:{i*1024} nt")
        else:
            r = vreg(slot, i - 4); a(f"buffer_load_dwordx4 v[{r}:{r+3}], {vVO}, {sV}, {soff} offen offset:{(i-4)*1024} nt")
    st = {"m": 0}
    def issue_static(throttle):
        m = st["m"]; t, i = divmod(m, 8)
        if i == 0 and t > 0: a(f"s_add_u32 {CUR}, {CUR}, {TSTEP}")
        if throttle is not None and m >= throttle: a(f"s_waitcnt vmcnt({throttle-1})")
        issue(slot_of(t), i, CUR); st["m"] = m + 1
    a("s_waitcnt lgkmcnt(0)")
    if startbar: a("s_barrier")
    for m in range(8 * P):
        issue_static(DP)
        if m in (DP, 23, 39): stamp({DP: 5, 23: 6, 39: 7}[m])
        if m == DP - 1:
            a(f"s_lshl_b32 {T0}, {A_}, 10\ns_add_u32 {T0}, {T0}, {TK}\ns_add_u32 s62, s16, {T0}\ns_addc_u32 s63, s17, 0")
            a(f"v_mov_b32 {vM}, 0xff7fffff\nv_mov_b32 {vML}, 0xff7fffff\nv_mov_b32 {vL}, 0\nv_mov_b32 {vS}, 0")
            for r in range(32): a(f"v_mov_b32 v{vOc+r}, 0")
            roles()
            if dbg: a(f"v_writelane_b32 {VDBG}, s96, 0")
    stamp(1)
    a("s_barrier")
    a(f"ds_read_b128 v[{vQ}:{vQ+3}], {vVO} offset:{QL}")
    a("s_waitcnt lgkmcnt(0)")
    stamp(2)
    a(f"s_mov_b32 {TKT}, 1\ns_atomic_add {TKT}, {CTR}, 0 glc")
    uid = [0]
    def qk_mfma(slot, sg):
        d = vD + 4 * sg
        a(f"v_mfma_f32_16x16x32_bf16 v[{d}:{d+3}], {kreg(slot, sg)}, v[{vQ}:{vQ+3}], 0")
    def qk_dpp(sg, k, tmp):
        d = vD + 4 * sg; u = [u for u in range(4) if u != sg][k]
        src1 = f"v{d+sg}" if k == 0 else tmp
        dst = vS if k == 2 else tmp
        a(f"v_add_f32_dpp {dst}, v{d+u}, {src1} row_ror:{(4*(sg-u))%16} row_mask:0xf bank_mask:{hex(1<<sg)}")
    def softmax(last):
        t = vT[0]; uid[0] += 1
        a(f"v_cvt_pk_bf16_f32 {t}, {vS}, {vS}\nv_lshlrev_b32 {t}, 16, {t}\nv_mul_f32 {t}, {SCALE}, {t}\nv_cvt_pk_bf16_f32 {t}, {t}, {t}\nv_lshlrev_b32 {t}, 16, {t}")
        a(f"v_cmp_gt_f32 vcc, {t}, {vM}\ns_cbranch_vccz L_nr{uid[0]}\ns_call_b64 {RET}, L_rescale\nL_nr{uid[0]}:")
        a(f"v_fma_f32 {t}, {t}, {LOG2E}, -{vML}\nv_exp_f32 {t}, {t}\nv_add_f32 {vL}, {vL}, {t}")
        a(f"v_mov_b32_dpp {vT[1]}, {t} row_ror:12 {FULL}\nv_cvt_pk_bf16_f32 v{vB}, {t}, {vT[1]}\nv_mov_b32_dpp v{vB+1}, v{vB} row_ror:8 {FULL}")
        if last:
            a(f"v_add_f32_dpp {vL}, {vL}, {vL} row_ror:4 {FULL}\nv_add_f32_dpp {vL}, {vL}, {vL} row_ror:8 {FULL}")
            for sw in ("16", "32"):
                a(f"v_mov_b32 {vT[2]}, {vL}\nv_permlane{sw}_swap_b32 {vT[2]}, {vL}\nv_add_f32 {vL}, {vL}, {vT[2]}")
    def pv(slot, sg):
        r0, r1 = vreg(slot, sg - 5), vreg(slot, sg - 4); h = 0 if sg == 5 else 1
        perms = []
        for w in range(4):
            perms.append(f"v_perm_b32 v{vA+2*(2*w)+h}, v{r1+w}, v{r0+w}, {SELL}")
            perms.append(f"v_perm_b32 v{vA+2*(2*w+1)+h}, v{r1+w}, v{r0+w}, {SELH}")
        if sg == 5:
            for p in perms: a(p)
        else:
            mf = [f"v_mfma_f32_16x16x16_bf16 v[{vOc+4*e}:{vOc+4*e+3}], v[{vA+2*e}:{vA+2*e+1}], v[{vB}:{vB+1}], v[{vOc+4*e}:{vOc+4*e+3}]" for e in range(8)]
            for k in range(8):
                a(perms[k])
                if k >= 2: a(mf[k-2])
            a(mf[6]); a(mf[7])
    def consume(slot, sg, last=False):
        if sg < 4:
            qk_mfma(slot, sg)
            for k in range(3): qk_dpp(sg, k, vT[0])
            if sg == 3: softmax(last)
        elif sg in (5, 7): pv(slot, sg)
    final_m = 8 * S0 + D
    def attempt(n, cnt):
        for _ in range(cnt):
            m = st["m"]
            if m >= final_m: return
            tt, ii = divmod(m, 8)
            need_n = 8 * (tt - P) + (ii if ii < 4 else (5 if ii < 6 else 7))
            if need_n > n: return
            issue_static(D)
    def wait_for(n):
        w = st["m"] - n - 1
        assert w >= 0
        if w < 63: a(f"s_waitcnt vmcnt({w})")
    for t in range(S0):
        sl = slot_of(t)
        wait_for(8 * t + 3)
        for sg in range(4): qk_mfma(sl, sg)
        attempt(8 * t + 3, (ipt + 1) // 2)
        for k in range(3):
            for sg in range(4): qk_dpp(sg, k, vT[sg])
        softmax(False)
        wait_for(8 * t + 5); pv(sl, 5)
        wait_for(8 * t + 7); pv(sl, 7)
        attempt(8 * t + 7, 99 if t == S0 - 1 else ipt // 2)
    assert st["m"] == final_m, (st["m"], final_m)
    a(f"s_mov_b32 {AD[(LA-1)]}, {CUR}")
    stamp(3)
    TB = 24 * NS
    s0 = 8 * LA - D
    WOslot = 2
    def wo_loads(regbase, tmp):
        a(f"s_lshl_b32 {T0}, {H_}, 2\ns_lshr_b32 {T1}, {J_}, 3\ns_add_u32 {T0}, {T0}, {T1}\ns_lshl_b32 {T0}, {T0}, 7\ns_and_b32 {T1}, {J_}, 7\ns_add_u32 {T0}, {T0}, {T1}\ns_lshl_b32 {T0}, {T0}, 10")
        a(f"s_lshl_b32 {T1}, s3, 8\ns_add_u32 {T0}, {T0}, {T1}")
        a(f"v_lshrrev_b32 {tmp[0]}, 4, v0\nv_and_b32 {tmp[1]}, 15, v0\nv_lshlrev_b32 {tmp[0]}, 15, {tmp[0]}\nv_lshl_add_u32 {tmp[0]}, {tmp[1]}, 4, {tmp[0]}")
        for i in range(4):
            if i: a(f"s_add_u32 {T0}, {T0}, 8192")
            a(f"buffer_load_dwordx4 v[{regbase+4*i}:{regbase+4*i+3}], {tmp[0]}, {sO}, {T0} offen nt")
    for rho in (0, 1):
        a(f"L_loop{rho}:")
        for sg in range(8):
            tl, k = divmod(sg + D, 8); sl = (rho + tl) % 2
            if sg == s0:
                a(f"s_waitcnt lgkmcnt(0)\ns_add_u32 {T0}, {TKT}, {TB}\ns_cmp_ge_u32 {T0}, 1024\ns_cbranch_scc1 L_drain{rho}")
                a(f"s_lshl_b32 {T0}, {T0}, 12\ns_add_u32 {AD[sl]}, {POOL}, {T0}\ns_mov_b32 {TKT}, 1\ns_atomic_add {TKT}, {CTR}, 0 glc")
            a(f"s_waitcnt vmcnt({D-1})")
            issue(sl, k, AD[sl])
            consume(rho, sg)
    a("s_branch L_loop0")
    vW = vreg(WOslot, 0)
    for rho in (0, 1):
        a(f"L_drain{rho}:")
        stamp(4)
        wo_loads(vW, (vT[2], vT[3]))
        lastn = 8 * LA - 1
        assert LA == 2 or s0 <= 3
        for n in range(s0, 8 * LA):
            tl, sg = divmod(n, 8)
            if sg not in (4, 6): a(f"s_waitcnt vmcnt({lastn-n+4})")
            consume((rho + tl) % 2, sg, last=(tl == LA - 1))
        if rho == 0: a("s_branch L_fin")
    a("L_fin:")
    a(f"s_sub_u32 {T0}, s3, 1\ns_mul_i32 {T1}, {T0}, {OBS}\ns_lshl_b32 {T0}, {T0}, 5\ns_add_u32 {T0}, {T0}, {MLB}")
    a(f"v_and_b32 {vT[0]}, 3, v0\nv_lshrrev_b32 {vT[1]}, 4, v0\nv_mul_u32_u24 {vT[2]}, 528, {vT[0]}\nv_lshl_add_u32 {vT[2]}, {vT[1]}, 4, {vT[2]}\nv_add_u32 {vT[2]}, {T1}, {vT[2]}")
    a(f"v_lshl_add_u32 {vT[0]}, {vT[0]}, 3, {T0}")
    a("s_mov_b32 exec_lo, 0x000f000f\ns_mov_b32 exec_hi, 0x000f000f")
    a(f"ds_write2_b32 {vT[0]}, {vML}, {vL} offset0:0 offset1:1")
    for e in range(8): a(f"ds_write_b128 {vT[2]}, v[{vOc+4*e}:{vOc+4*e+3}] offset:{OB+64*e}")
    a("s_mov_b64 exec, -1")
    a("s_branch L_tail")

    a("L_rescale:")
    t = vT[0]; u_, w_ = vT[1], vT[2]
    a(f"v_max_f32 {u_}, {t}, {vM}\nv_max_f32_dpp {u_}, {u_}, {u_} row_ror:4 {FULL}\nv_max_f32_dpp {u_}, {u_}, {u_} row_ror:8 {FULL}")
    for sw in ("16", "32"):
        a(f"v_mov_b32 {w_}, {u_}\nv_permlane{sw}_swap_b32 {w_}, {u_}\nv_max_f32 {u_}, {u_}, {w_}")
    a(f"v_mov_b32 {vM}, {u_}\nv_mul_f32 {u_}, {LOG2E}, {u_}\nv_sub_f32 {w_}, {vML}, {u_}\nv_exp_f32 {w_}, {w_}\nv_mov_b32 {vML}, {u_}\nv_mul_f32 {vL}, {vL}, {w_}")
    for r in range(0, 32, 2): a(f"v_pk_mul_f32 v[{vOc+r}:{vOc+r+1}], v[{vOc+r}:{vOc+r+1}], v[14:15] op_sel_hi:[1,0]")
    a(f"s_setpc_b64 {RET}")

    a("L_service:\ns_setprio 3")
    vL16, vr, vc = "v2", "v4", "v5"
    a(f"v_lshlrev_b32 {vL16}, 4, v0\nv_lshrrev_b32 {vr}, 3, v0\nv_and_b32 {vc}, 7, v0")
    a(f"v_lshlrev_b32 v6, 17, {vr}\nv_lshl_add_u32 v6, {vc}, 4, v6\nv_mov_b32 v21, 0")
    RB = "s31"
    a(f"s_lshr_b32 {RB}, {J_}, 3\ns_lshl_b32 {T0}, {RB}, 20\ns_lshl_b32 {T2}, {H_}, 10\ns_add_u32 {T0}, {T0}, {T2}\ns_and_b32 {T2}, {J_}, 7\ns_lshl_b32 {T2}, {T2}, 7\ns_add_u32 {T0}, {T0}, {T2}")
    a(f"s_lshl_b32 {T1}, {A_}, 10\ns_add_u32 {T1}, {T1}, {TK}\ns_lshl_b32 {T2}, {X_}, 7\ns_add_u32 {T1}, {T1}, {T2}\ns_mov_b32 {T2}, {NON}")
    a("s_waitcnt lgkmcnt(0)")
    a(f"buffer_load_dwordx4 v[8:11], {vL16}, {sX}, 0 offen")
    WB = 64
    for i in range(16):
        if i: a(f"s_add_u32 {T0}, {T0}, 8192")
        a(f"buffer_load_dwordx4 v[{WB+4*i}:{WB+4*i+3}], v6, {sQ}, {T0} offen nt")
    a(f"buffer_load_dwordx2 v[58:59], v21, {sW}, {T2} offen sc1")
    a(f"s_mov_b64 exec, 1\nbuffer_store_dword v21, v21, {sW}, {T1} offen sc1\ns_mov_b64 exec, -1")
    if startbar: a("s_barrier")
    if dbg: a(f"v_writelane_b32 {VDBG}, s96, 0")
    NST = 2
    roles()
    def allreduce(r, tmp, op="v_add_f32"):
        for n in (8, 4, 2, 1): a(f"{op}_dpp {r}, {r}, {r} row_ror:{n} {FULL}")
        for sw in ("16", "32"): a(f"v_mov_b32 {tmp}, {r}\nv_permlane{sw}_swap_b32 {tmp}, {r}\n{op} {r}, {r}, {tmp}")
    def bfr(r, src=None): a(f"v_cvt_pk_bf16_f32 {r}, {src or r}, {src or r}\nv_lshlrev_b32 {r}, 16, {r}")
    a(f"v_bfe_u32 v22, v0, 5, 1\nv_bfe_u32 v23, v0, 4, 1\nv_lshlrev_b32 v22, 2, v22\nv_lshl_add_u32 v22, v23, 1, v22\nv_bfe_u32 v23, v0, 3, 1\nv_add_u32 v22, v22, v23\nv_lshl_add_u32 v22, {vc}, 3, v22\nv_lshlrev_b32 v23, 3, v22")
    a(f"s_lshl_b32 {T0}, {RB}, 8\nv_lshl_add_u32 v20, {vr}, 5, {T0}")
    a(f"s_waitcnt vmcnt({16+NST})")
    for w in range(4): a(f"v_lshlrev_b32 v{24+2*w}, 16, v{8+w}\nv_and_b32 v{25+2*w}, 0xffff0000, v{8+w}")
    a("v_add_f32 v32, v24, v25\nv_add_f32 v33, v26, v27\nv_add_f32 v34, v28, v29\nv_add_f32 v35, v30, v31\nv_add_f32 v32, v32, v33\nv_add_f32 v34, v34, v35\nv_add_f32 v32, v32, v34")
    allreduce("v32", "v33")
    a(f"v_mul_f32 v32, {fhex(1/512)}, v32")
    for i in range(8): a(f"v_sub_f32 v{40+i}, v{24+i}, v32")
    a("v_mul_f32 v34, v40, v40\nv_mul_f32 v35, v41, v41")
    for i in range(2, 8): a(f"v_fmac_f32 v{34+(i&1)}, v{40+i}, v{40+i}")
    a("v_add_f32 v34, v34, v35")
    allreduce("v34", "v33")
    a(f"v_mul_f32 v34, {fhex(1/512)}, v34")
    bfr("v32"); bfr("v34")
    a(f"v_add_f32 v34, {fhex(1e-5)}, v34"); bfr("v34")
    a("v_sqrt_f32 v34, v34"); bfr("v34"); a("v_rcp_f32 v34, v34")
    for i in range(8): a(f"v_sub_f32 v{40+i}, v{24+i}, v32")
    for w in range(4): a(f"v_cvt_pk_bf16_f32 v{48+w}, v{40+2*w}, v{41+2*w}")
    for w in range(4): a(f"v_lshlrev_b32 v{40+2*w}, 16, v{48+w}\nv_and_b32 v{41+2*w}, 0xffff0000, v{48+w}")
    for i in range(8): a(f"v_mul_f32 v{40+i}, v{40+i}, v34")
    for w in range(4): a(f"v_cvt_pk_bf16_f32 v{48+w}, v{40+2*w}, v{41+2*w}")
    a(f"ds_write_b128 {vL16}, v[48:51] offset:{XN}")
    a(f"s_waitcnt lgkmcnt(0)\nds_read_b128 v[24:27], v20 offset:{XN}\nds_read_b128 v[28:31], v20 offset:{XN+16}\ns_waitcnt lgkmcnt(0)")
    stamp(1)
    ACC = 40
    def pairdot(r0, r1, xp, acc, first, tmps=("v60", "v61", "v62", "v63")):
        for w in range(4):
            for hh, sel in ((0, SELL), (1, SELH)):
                tm = tmps[(2*w+hh) % len(tmps)]
                a(f"v_perm_b32 {tm}, v{r1+w}, v{r0+w}, {sel}")
                a(f"v_dot2_f32_bf16 v{acc+2*w+hh}, {tm}, {xp}, {'0' if first else 'v%d' % (acc+2*w+hh)}")
    for k in range(8):
        a(f"s_waitcnt vmcnt({16-2*k-2+NST})")
        pairdot(WB + 8*k, WB + 8*k + 4, f"v{24+k}", ACC, k == 0)
    def redscat8(acc, out):
        for e in range(4): a(f"v_permlane32_swap_b32 v{acc+e}, v{acc+e+4}")
        for e in range(4): a(f"v_add_f32 v{acc+e}, v{acc+e}, v{acc+e+4}")
        for e in range(2): a(f"v_permlane16_swap_b32 v{acc+e}, v{acc+e+2}")
        for e in range(2): a(f"v_add_f32 v{acc+e}, v{acc+e}, v{acc+e+2}")
        if out:
            a(f"v_add_f32_dpp {out}, v{acc}, v{acc} row_ror:8 row_mask:0xf bank_mask:0x3\nv_add_f32_dpp {out}, v{acc+1}, v{acc+1} row_ror:8 row_mask:0xf bank_mask:0xc")
    redscat8(ACC, None)
    a(f"s_lshl_b32 {T3}, {H_}, 14\ns_lshl_b32 {T2}, {J_}, 9\ns_add_u32 {T0}, {T3}, {T2}")
    assert QP == 0
    a(f"v_add_f32_dpp v56, v{ACC}, v{ACC} row_ror:8 {FULL}\nv_add_f32_dpp v57, v{ACC+1}, v{ACC+1} row_ror:8 {FULL}")
    a("s_waitcnt vmcnt(0)\nv_add_co_u32 v58, vcc, 1, v58\nv_addc_co_u32 v59, vcc, 0, v59, vcc")
    a(f"s_mov_b32 exec_lo, 0x00ff00ff\ns_mov_b32 exec_hi, 0x00ff00ff\nbuffer_store_dwordx4 v[56:59], v23, {sW}, {T0} offen sc1\ns_mov_b64 exec, -1")
    stamp(2)
    a(f"ds_write_b64 v21, v[58:59] offset:{NL}")
    def tagcheck(regs, acc):
        first = True
        for r in regs:
            if first: a(f"v_xor_b32 {acc}, v{r}, v58"); first = False
            else: a(f"v_bitop3_b32 {acc}, v{r}, v58, {acc} bitop3:0xbe")
            a(f"v_bitop3_b32 {acc}, v{r+1}, v59, {acc} bitop3:0xbe")
    a(f"s_mov_b32 {SPN}, {SPIN}")
    if prepoll:
        a(f"v_and_b32 v34, 31, v0\nv_lshlrev_b32 v34, 9, v34\nL_pollq0:\nbuffer_load_dwordx2 v[32:33], v34, {sW}, {T3} offen offset:504 sc1")
        a(f"s_sub_u32 {SPN}, {SPN}, 1\ns_cbranch_scc1 L_pollq\ns_waitcnt vmcnt(0)")
        tagcheck([32], "v35")
        a("v_cmp_ne_u32 vcc, 0, v35\ns_cbranch_vccnz L_pollq0")
        stamp(3)
    a(f"L_pollq:\ns_mov_b32 {T0}, {T3}")
    for rb in range(4):
        if rb: a(f"s_add_u32 {T0}, {T0}, 4096")
        for k in range(4): a(f"buffer_load_dwordx4 v[{WB+16*rb+4*k}:{WB+16*rb+4*k+3}], {vL16}, {sW}, {T0} offen offset:{1024*k} sc1")
    a(f"s_sub_u32 {SPN}, {SPN}, 1\ns_cbranch_scc1 L_pollq_done\ns_waitcnt vmcnt(0)")
    tagcheck([WB + 4 * k + 2 for k in range(16)], "v33")
    a("v_cmp_ne_u32 vcc, 0, v33\ns_cbranch_vccnz L_pollq\nL_pollq_done:\ns_waitcnt vmcnt(0)")
    stamp(4)
    for k in range(4):
        for e in range(2):
            r = WB + 4 * k + e
            a(f"v_add_f32 v{r}, v{r}, v{r+16}\nv_add_f32 v{r+32}, v{r+32}, v{r+48}\nv_add_f32 v{r}, v{r}, v{r+32}")
    a("v_lshrrev_b32 v34, 2, v0\nv_and_b32 v35, 3, v0\nv_lshlrev_b32 v34, 6, v34\nv_lshl_add_u32 v34, v35, 2, v34")
    for w in range(4): a(f"v_cvt_pk_bf16_f32 v{48+w}, v{WB+4*w}, v{WB+4*w+1}")
    for w in range(4): a(f"ds_write_b32 v34, v{48+w} offset:{QL+16*w}")
    a(f"s_waitcnt lgkmcnt(0)\ns_barrier\ns_setprio {gprio}")
    stamp(5)
    a(f"s_cmp_eq_u32 {ROLE}, 0\ns_cbranch_scc1 L_noglu")
    a(f"s_mov_b32 {T0}, {64*3584}\nv_mul_lo_u32 v6, {vr}, {T0}\nv_lshl_add_u32 v6, {vc}, 4, v6\nv_lshlrev_b32 v7, 7, {vr}\ns_lshl_b32 {T0}, {A_}, 7")
    GB = [WB + 16 * k for k in range(GR)]
    def glu_issue(b):
        a(f"buffer_load_dwordx4 v[{b}:{b+3}], v6, {s1}, {T0} offen nt\nbuffer_load_dwordx4 v[{b+4}:{b+7}], v6, {s1}, {T0} offen offset:3584 nt")
        a(f"buffer_load_dwordx4 v[{b+8}:{b+11}], v6, {s3_}, {T0} offen nt\nbuffer_load_dwordx4 v[{b+12}:{b+15}], v6, {s3_}, {T0} offen offset:3584 nt\ns_add_u32 {T0}, {T0}, 7168")
    for r in range(16): a(f"v_mov_b32 v{ACC+r}, 0")
    for k in range(GR): glu_issue(GB[k])
    a(f"s_mov_b32 {T2}, {32//GR}\nL_glu1:")
    for k in range(GR // 4): a(f"ds_read_b128 v[{24+4*k}:{27+4*k}], v7 offset:{XN+16*k}")
    a(f"v_add_u32 v7, {4*GR}, v7")
    for k in range(GR):
        a(f"s_waitcnt vmcnt({4*GR-4}) lgkmcnt(0)")
        pairdot(GB[k], GB[k] + 4, f"v{24+k}", ACC, False); pairdot(GB[k] + 8, GB[k] + 12, f"v{24+k}", ACC + 8, False)
        a(f"s_cmp_eq_u32 {T2}, 1\ns_cbranch_scc1 L_g1s{k}")
        glu_issue(GB[k])
        a(f"s_branch L_g1t{k}\nL_g1s{k}:\ns_waitcnt vmcnt({max(4*(GR-2-k), 0)})\nL_g1t{k}:")
    a(f"s_sub_u32 {T2}, {T2}, 1\ns_cmp_lg_u32 {T2}, 0\ns_cbranch_scc1 L_glu1")
    a(f"s_lshl_b32 {T0}, {A_}, 16")
    def w2_issue(b):
        for i in range(4): a(f"buffer_load_dwordx4 v[{b+4*i}:{b+4*i+3}], {vL16}, {s2_}, {T0} offen offset:{1024*i} nt")
        a(f"s_add_u32 {T0}, {T0}, 4096")
    for k in range(GR): w2_issue(GB[k])
    redscat8(ACC, "v33"); redscat8(ACC + 8, "v34")
    def silu_bf(r, tmp):
        a(f"v_mul_f32 {tmp}, {LOG2E}, {r}\nv_exp_f32 {tmp}, -{tmp}\nv_add_f32 {tmp}, 1.0, {tmp}\nv_rcp_f32 {tmp}, {tmp}\nv_mul_f32 {r}, {r}, {tmp}"); bfr(r)
    bfr("v33"); bfr("v34"); silu_bf("v33", "v35")
    a(f"v_mul_f32 v33, v33, v34\nv_cvt_pk_bf16_f32 v33, v33, v33\nv_lshlrev_b32 v35, 1, v22\nds_write_b16 v35, v33 offset:{HL}")
    for r in range(8): a(f"v_mov_b32 v{ACC+r}, 0")
    a(f"v_mov_b32 v7, 0\ns_mov_b32 {T2}, {16//GR}\ns_waitcnt lgkmcnt(0)\nL_glu2:")
    for k in range(GR // 2): a(f"ds_read_b128 v[{24+4*k}:{27+4*k}], v7 offset:{HL+16*k}")
    a(f"v_add_u32 v7, {8*GR}, v7")
    for k in range(GR):
        a(f"s_waitcnt vmcnt({4*GR-4}) lgkmcnt(0)")
        pairdot(GB[k], GB[k] + 4, f"v{24+2*k}", ACC, False); pairdot(GB[k] + 8, GB[k] + 12, f"v{25+2*k}", ACC, False)
        a(f"s_cmp_eq_u32 {T2}, 1\ns_cbranch_scc1 L_g2s{k}")
        w2_issue(GB[k])
        a(f"s_branch L_g2t{k}\nL_g2s{k}:\ns_waitcnt vmcnt({max(4*(GR-2-k), 0)})\nL_g2t{k}:")
    a(f"s_sub_u32 {T2}, {T2}, 1\ns_cmp_lg_u32 {T2}, 0\ns_cbranch_scc1 L_glu2")
    a(f"v_lshlrev_b32 v33, 11, v0\ns_lshl_b32 {T0}, {A_}, 6\ns_add_u32 {T0}, {T0}, {GA}")
    for k in range(4):
        a(f"v_mov_b32 v{WB+4*k}, v{ACC+2*k}\nv_mov_b32 v{WB+4*k+1}, v{ACC+2*k+1}\nv_mov_b32 v{WB+4*k+2}, v58\nv_mov_b32 v{WB+4*k+3}, v59")
    for k in range(4): a(f"buffer_store_dwordx4 v[{WB+4*k}:{WB+4*k+3}], v33, {sW}, {T0} offen offset:{16*k} sc1")
    a("L_noglu:\ns_setprio 0")
    stamp(6)
    wo_loads(vW, (vT[2], vT[3]))
    def red2(c, tmp):
        a(f"v_permlane32_swap_b32 v{c}, v{c+1}\nv_add_f32 v{c}, v{c}, v{c+1}\nv_mov_b32 {tmp}, v{c}\nv_permlane16_swap_b32 {tmp}, v{c}\nv_add_f32 v{c}, v{c}, {tmp}")
        a(f"v_add_f32_dpp v{c}, v{c}, v{c} row_ror:4 {FULL}\nv_add_f32_dpp v{c}, v{c}, v{c} row_ror:8 {FULL}")
    a(f"s_cmp_eq_u32 {FIN}, -1\ns_cbranch_scc1 L_nofinalprep")
    a(f"s_lshl_b32 {T0}, {FIN}, 11\ns_add_u32 {T0}, {T0}, {GA}\nv_lshlrev_b32 v35, 1, {vc}\ns_lshl_b32 {T2}, {FIN}, 4")
    a(f"buffer_load_ushort v7, v35, {sX}, {T2} offen\nv_mov_b32 v28, 0\nv_mov_b32 v29, 0\nv_mov_b32 v30, v58\nv_mov_b32 v31, v59\ns_mov_b32 {SPN}, {SPIN}\nL_pollg:")
    a(f"buffer_load_dwordx4 v[24:27], {vL16}, {sW}, {T0} offen sc1")
    a(f"s_mov_b32 exec_hi, 0xffff\nbuffer_load_dwordx4 v[28:31], {vL16}, {sW}, {T0} offen offset:1024 sc1\ns_mov_b64 exec, -1")
    a(f"s_sub_u32 {SPN}, {SPN}, 1\ns_cbranch_scc1 L_pollg_done\ns_waitcnt vmcnt(0)")
    tagcheck([26, 30], "v40")
    a(f"v_cmp_ne_u32 vcc, 0, v40\ns_cbranch_vccz L_pollg_done\ns_sleep {gsleep}\ns_branch L_pollg\nL_pollg_done:\ns_waitcnt vmcnt(0)")
    a("v_add_f32 v24, v24, v28\nv_add_f32 v25, v25, v29")
    red2(24, "v26")
    bfr("v24"); silu_bf("v24", "v25")
    a(f"v_lshrrev_b32 v26, 5, v0\nv_and_b32 v25, 3, v0\nv_lshl_add_u32 v25, v25, 1, v26\nv_lshlrev_b32 v25, 2, v25")
    a(f"ds_write_b32 v25, v24 offset:{GL}\nv_lshlrev_b32 v34, 2, {vc}\nv_lshlrev_b32 v7, 16, v7\ns_waitcnt lgkmcnt(0)\nds_read_b32 v6, v34 offset:{GL}")
    a("L_nofinalprep:")
    stamp(7)
    a("L_tail:")
    vA1, vA2, vA3, vA4, vA6 = "v12", "v13", "v14", "v15", "v17"
    a(f"v_mov_b32 v19, 0\nds_read_b64 v[4:5], v19 offset:{NL}")
    a(f"s_mul_i32 {T0}, s3, 528\nv_lshl_add_u32 {vA1}, v0, 3, {T0}\ns_lshl_b32 {T0}, s3, 3\nv_mov_b32 {vA2}, {T0}")
    a(f"v_lshrrev_b32 {vA3}, 3, v0\nv_and_b32 v18, 7, v0\nv_lshlrev_b32 {vA3}, 12, {vA3}\nv_lshl_add_u32 {vA3}, v18, 4, {vA3}")
    a("s_mov_b32 s82, 0xaaaaaaaa\ns_mov_b32 s83, 0xaaaaaaaa")
    a(f"s_lshl_b32 s76, {H_}, 17\ns_lshl_b32 {T0}, s3, 15\ns_add_u32 s76, s76, {T0}\ns_lshl_b32 {T0}, {J_}, 7\ns_add_u32 s76, s76, {T0}\ns_add_u32 s76, s76, {H1}")
    a(f"v_and_b32 v18, 15, v0\nv_lshrrev_b32 v16, 4, v0\nv_lshlrev_b32 {vA4}, 7, v18\nv_lshl_add_u32 {vA4}, v16, 5, {vA4}")
    a(f"s_lshl_b32 s78, {WP}, 12\ns_add_u32 s78, s78, {H1}")
    a(f"v_lshlrev_b32 {vA6}, 14, v18\nv_lshl_add_u32 {vA6}, v16, 4, {vA6}")
    a(f"s_lshl_b32 s80, s3, 18\ns_lshl_b32 {T0}, {WP}, 6\ns_add_u32 s80, s80, {T0}\ns_add_u32 s80, s80, {H2}")
    a("s_waitcnt lgkmcnt(0)\nv_mov_b32 v39, v4\ns_barrier")
    stamp(8)
    for s_ in range(3): a(f"ds_read_b64 v[{20+2*s_}:{21+2*s_}], {vA2} offset:{MLB+32*s_}")
    for s_ in range(3): a(f"ds_read_b64 v[{26+2*s_}:{27+2*s_}], {vA1} offset:{OB+OBS*s_}")
    a("s_waitcnt lgkmcnt(3)\nv_max3_f32 v32, v20, v22, v24")
    for s_ in range(3): a(f"v_sub_f32 v{20+2*s_}, v{20+2*s_}, v32")
    for s_ in range(3): a(f"v_exp_f32 v{20+2*s_}, v{20+2*s_}")
    a("v_mul_f32 v33, v21, v20\nv_fmac_f32 v33, v23, v22\nv_fmac_f32 v33, v25, v24")
    a("s_waitcnt lgkmcnt(0)")
    a("v_mul_f32 v36, v26, v20\nv_mul_f32 v37, v27, v20\nv_fmac_f32 v36, v28, v22\nv_fmac_f32 v37, v29, v22\nv_cndmask_b32 v38, v32, v33, s[82:83]\nv_fmac_f32 v36, v30, v24\nv_fmac_f32 v37, v31, v24")
    a(f"buffer_store_dwordx4 v[36:39], {vA3}, {sW}, s76 offen sc1")
    stamp(9)
    a("s_waitcnt vmcnt(1)")
    PW = 52
    for hp in range(2):
        for w in range(4):
            a(f"v_perm_b32 v{PW+8*hp+2*w}, v{vW+8*hp+4+w}, v{vW+8*hp+w}, {SELL}\nv_perm_b32 v{PW+8*hp+2*w+1}, v{vW+8*hp+4+w}, v{vW+8*hp+w}, {SELH}")
    a(f"s_mov_b32 {SPN}, {SPIN}\nL_poll1:")
    for i in range(4): a(f"buffer_load_dwordx4 v[{20+4*i}:{23+4*i}], {vA4}, {sW}, s78 offen offset:{(i>>1)*2048+(i&1)*16} sc1")
    a(f"s_sub_u32 {SPN}, {SPN}, 1\ns_cbranch_scc1 L_poll1_done\ns_waitcnt vmcnt(2)")
    a("v_xor_b32 v44, v23, v4\nv_bitop3_b32 v44, v27, v4, v44 bitop3:0xbe\ns_waitcnt vmcnt(0)\nv_bitop3_b32 v44, v31, v4, v44 bitop3:0xbe\nv_max_f32 v45, v22, v30\nv_bitop3_b32 v44, v35, v4, v44 bitop3:0xbe")
    a("v_cmp_ne_u32 vcc, 0, v44\ns_cbranch_vccnz L_poll1\nL_poll1_done:\ns_waitcnt vmcnt(0)")
    stamp(10)
    for n in (8, 4, 2, 1): a(f"v_max_f32_dpp v45, v45, v45 row_ror:{n} {FULL}")
    a("v_sub_f32 v22, v22, v45\nv_sub_f32 v30, v30, v45\nv_exp_f32 v22, v22\nv_exp_f32 v30, v30")
    for r in (26, 20, 21, 24, 25): a(f"v_mul_f32 v{r}, v{r}, v22")
    for r in (26, 20, 21, 24, 25): a(f"v_fmac_f32 v{r}, v{r+8}, v30")
    for n in (8, 4, 2, 1):
        for r in (26, 20, 21, 24, 25): a(f"v_add_f32_dpp v{r}, v{r}, v{r} row_ror:{n} {FULL}")
    a("v_rcp_f32 v26, v26\nv_mov_b32 v46, v4\nv_mov_b32 v47, v5")
    for r in (20, 21, 24, 25): a(f"v_mul_f32 v{r}, v{r}, v26")
    a("v_cvt_pk_bf16_f32 v28, v20, v21\nv_cvt_pk_bf16_f32 v29, v24, v25")
    for e in range(8): a(f"v_dot2_f32_bf16 v{36+e}, v{PW+e}, v28, 0")
    for e in range(8): a(f"v_dot2_f32_bf16 v{36+e}, v{PW+8+e}, v29, v{36+e}")
    for e in range(4): a(f"v_permlane32_swap_b32 v{36+e}, v{36+e+4}")
    for e in range(4): a(f"v_add_f32 v{36+e}, v{36+e}, v{36+e+4}")
    for e in range(2): a(f"v_permlane16_swap_b32 v{36+e}, v{36+e+2}")
    for e in range(2): a(f"v_add_f32 v{44+e}, v{36+e}, v{36+e+2}")
    a(f"buffer_store_dwordx4 v[44:47], {vA6}, {sW}, s80 offen sc1")
    stamp(11)
    a(f"s_cmp_eq_u32 {FIN}, -1\ns_cbranch_scc1 L_done")
    a(f"s_lshl_b32 s80, {FIN}, 14\ns_lshl_b32 {T0}, s3, 12\ns_add_u32 s80, s80, {T0}\ns_add_u32 s80, s80, {H2}\nv_lshlrev_b32 v12, 4, v0")
    a(f"v_and_b32 v13, 3, v0\nv_lshrrev_b32 v14, 5, v0\nv_lshl_add_u32 v13, v13, 1, v14\nv_lshlrev_b32 v13, 4, v13\ns_lshl_b32 {T0}, s3, 2\nv_add_u32 v13, {T0}, v13")
    a(f"v_and_b32 v14, 7, v0\nv_lshlrev_b32 v15, 4, v14\nv_lshlrev_b32 v14, 1, v14\ns_lshl_b32 {T1}, {FIN}, 4")
    a(f"s_mov_b32 {SPN}, {SPIN}\nL_poll2:")
    for i in range(4): a(f"buffer_load_dwordx4 v[{20+4*i}:{23+4*i}], v12, {sW}, s80 offen offset:{1024*i} sc1")
    a(f"s_sub_u32 {SPN}, {SPN}, 1\ns_cbranch_scc1 L_poll2_done")
    for i in range(4):
        if i in (0, 2): a(f"s_waitcnt vmcnt({2-i})")
        a(f"v_xor_b32 v36, v22, v4" if i == 0 else f"v_bitop3_b32 v36, v{22+4*i}, v4, v36 bitop3:0xbe")
        a(f"v_xor_b32 v37, v23, v5" if i == 0 else f"v_bitop3_b32 v37, v{23+4*i}, v5, v37 bitop3:0xbe")
    a("v_or_b32 v36, v36, v37\nv_cmp_ne_u32 vcc, 0, v36\ns_cbranch_vccnz L_poll2\nL_poll2_done:\ns_waitcnt vmcnt(0)")
    stamp(12)
    a("v_add_f32 v20, v20, v24\nv_add_f32 v21, v21, v25\nv_add_f32 v28, v28, v32\nv_add_f32 v29, v29, v33\nv_add_f32 v20, v20, v28\nv_add_f32 v21, v21, v29")
    red2(20, "v22")
    a(f"ds_write_b32 v13, v20 offset:{F2}\ns_waitcnt lgkmcnt(0)\ns_barrier")
    a("s_cmp_lg_u32 s3, 0\ns_cbranch_scc1 L_done")
    a(f"ds_read_b128 v[20:23], v15 offset:{F2}\ns_waitcnt lgkmcnt(0)\nv_add_f32 v20, v20, v21\nv_add_f32 v22, v22, v23\nv_add_f32 v20, v20, v22")
    bfr("v20"); a("v_mul_f32 v20, v20, v6"); bfr("v20"); a("v_add_f32 v20, v20, v7\nv_cvt_pk_bf16_f32 v20, v20, v20")
    a(f"s_mov_b64 exec, 0xff\nbuffer_store_short v20, v14, {sY}, {T1} offen\ns_mov_b64 exec, 1")
    a(f"s_cmp_lg_u32 {FIN}, 0\ns_cbranch_scc1 L_nonon\ns_mov_b32 {T0}, {NON}\nbuffer_store_dwordx2 v[4:5], v19, {sW}, {T0} offen sc1\nL_nonon:\ns_mov_b64 exec, -1")
    a("L_done:")
    if dbg:
        stamp(13)
        a("s_getreg_b32 s98, hwreg(HW_REG_XCC_ID)")
        a(f"v_writelane_b32 {VDBG}, s98, 14")
        a(f"s_lshl_b32 {T0}, s2, 2\ns_add_u32 {T0}, {T0}, s3\ns_lshl_b32 {T0}, {T0}, 8\ns_add_u32 {T0}, {T0}, {DBG}\nv_lshlrev_b32 v12, 2, v0\nbuffer_store_dword {VDBG}, v12, {sW}, {T0} offen")
    a("L_end:\ns_endpgm")
    a.pad()
    a('.section .rodata,"a"\n.p2align 6')
    a(f".amdhsa_kernel {KN}_kernel")
    a("""  .amdhsa_next_free_vgpr 512
  .amdhsa_next_free_sgpr 102
  .amdhsa_accum_offset 256
  .amdhsa_group_segment_fixed_size 0
  .amdhsa_kernarg_size 96
  .amdhsa_user_sgpr_count 2
  .amdhsa_user_sgpr_kernarg_segment_ptr 1
  .amdhsa_system_sgpr_workgroup_id_x 1
  .amdhsa_float_denorm_mode_32 3
.end_amdhsa_kernel""")
    return a.text()
if __name__ == "__main__":
    kw = eval("dict(%s)" % (sys.argv[2] if len(sys.argv) > 2 else ""))
    open(sys.argv[1], "w").write(gen(**kw))
```

```python
import sys
from asmlib import *
KN = "recurrent_scan__gqa_block_cached__glu_gated_swiglu__decode"
QP, TK, NON, GP1, GA, H1, H2, DBG = 0x0, 0x20000, 0x28000, 0x30000, 0x70000, 0x100000, 0x200000, 0x400000
XN, QL, NL, HL, GL, F2, C1, MLB, OB = 0, 1024, 2048, 2064, 2192, 2304, 2432, 2816, 2944
OBS = 2112
LDS_BYTES = OB + 3 * OBS
TRG = 2056
SPIN = 1 << 20
FULL = "row_mask:0xf bank_mask:0xf"

def gen(P=7, dbg=False, E=4, startbar=True, gsleep=16, gprio=1, GR=8, prepoll=True, NTOT=35, GH=8, nogpoll=False, noglu=False, noq=False, wolate=2, partial=True, cpf=True, relayout=True, contig=False, THR=0, tsleep=4, abl=0, rot=1, w2early=False, psl=0, h1fl='sc1', h1ld='sc1', wsb=0, remap=True):
    a = Asm()
    hdr = open("cdna_kernels/" + KN + ".s.ref").read().split("; Override launch")[0]
    a.L += hdr.rstrip().split("\n")
    a(f"; @launch grid=(256,1,1) block=(256,1,1) lds={LDS_BYTES}")
    a('.amdgcn_target "amdgcn-amd-amdhsa--gfx950"\n.text')
    a(f".globl {KN}_kernel\n.p2align 8\n.type {KN}_kernel,@function\n{KN}_kernel:")
    sK, sV, sW, sO = "s[8:11]", "s[12:15]", "s[16:19]", "s[20:23]"
    sQ, sX, sY, s1, s3_, s2_ = "s[24:27]", "s[32:35]", "s[36:39]", "s[40:43]", "s[44:47]", "s[48:51]"
    X_, A_, H_, SUB, J_, WP, POOL, FIN, _u, TKT = ("s%d" % i for i in range(52, 62))
    AD = ["s28", "s29"]
    CUR = "s30"
    CTR, RET = "s[62:63]", "s[64:65]"
    T0, T1, T2, T3 = "s66", "s67", "s68", "s69"
    SELL, SELH, SCALE, LOG2E, SPN, ROLE = "s70", "s71", "s72", "s73", "s74", "s75"
    VDBG = "v3"
    def stamp(k):
        if dbg: a(f"s_memrealtime s[98:99]\ns_waitcnt lgkmcnt(0)\nv_writelane_b32 {VDBG}, s98, {k}")
    a("s_cmp_ge_u32 s2, 256\ns_cbranch_scc1 L_end")
    if dbg: a("s_memrealtime s[96:97]")
    if cpf:
        a("s_getpc_b64 s[4:5]\nL_pc:\ns_lshr_b32 s6, s2, 3\ns_lshl_b32 s6, s6, 7\nv_lshl_add_u32 v2, v0, 12, s6\nv_cmp_gt_u32 vcc, L_end-L_pc, v2\ns_and_saveexec_b64 s[6:7], vcc\ns_cbranch_execz L_nopf\nglobal_load_dword v247, v2, s[4:5]\nL_nopf:\ns_mov_b64 exec, s[6:7]")
    for base, off in ((8, 8), (12, 16), (24, 24), (32, 0), (16, 88), (20, 32), (36, 72), (40, 48), (44, 56), (48, 64)):
        a(f"s_load_dwordx2 s[{base}:{base+1}], s[0:1], {off}")
    a("v_lshrrev_b32 v1, 6, v0\nv_and_b32 v0, 63, v0\nv_readfirstlane_b32 s3, v1")
    for base, n in ((8, 0x8000000), (12, 0x8000000), (16, 0x20000000), (20, 0x400000), (24, 0x400000), (32, 1024), (36, 1024), (40, 512*3584), (44, 512*3584), (48, 1792*1024)):
        a(f"s_mov_b32 s{base+2}, {hex(n)}\ns_mov_b32 s{base+3}, 0x20000")
    a(f"s_and_b32 {X_}, s2, 7\ns_lshr_b32 {A_}, s2, 3\ns_and_b32 {H_}, {A_}, 7\ns_lshr_b32 {SUB}, {A_}, 3")
    a(f"s_lshl_b32 {J_}, {SUB}, 3\ns_add_u32 {J_}, {J_}, {X_}\ns_lshl_b32 {WP}, {H_}, 5\ns_add_u32 {WP}, {WP}, {J_}")
    a(f"s_mov_b32 {SELL}, 0x05040100\ns_mov_b32 {SELH}, 0x07060302\ns_mov_b32 {SCALE}, {fhex(128**-0.5)}\ns_mov_b32 {LOG2E}, {fhex(1.4426950408889634)}")
    if dbg: a(f"v_mov_b32 {VDBG}, 0\nv_mov_b32 v246, 0")
    def roles():
        a(f"s_sub_u32 {T0}, {X_}, {A_}\ns_and_b32 {T0}, {T0}, 7\ns_lshl_b32 {T1}, {A_}, 1\ns_add_u32 {T2}, {T1}, 1")
        a(f"s_cmp_eq_u32 {T0}, 4\ns_cselect_b32 {FIN}, {T1}, -1\ns_cmp_eq_u32 {T0}, 2\ns_cselect_b32 {FIN}, {T2}, {FIN}")
        a(f"s_cmp_eq_u32 {T0}, 0\ns_cselect_b32 {ROLE}, 1, 0\ns_cmp_lt_u32 {A_}, 28\ns_cselect_b32 {ROLE}, {ROLE}, 0")
    a("s_cmp_eq_u32 s3, 0\ns_cbranch_scc1 L_service")

    vKO, vVO, vQ = "v1", "v2", 4
    vM, vML, vL, vS, vT = "v8", "v9", "v10", "v11", ["v12", "v13", "v14", "v15"]
    vB, vD, vA, vOc, vV0 = 16, 20, 36, 52, 84
    kreg = lambda slot, i: f"a[{16*slot+4*i}:{16*slot+4*i+3}]"
    vreg = lambda slot, i: vV0 + 16 * slot + 4 * i
    a(f"s_lshl_b32 {POOL}, {H_}, 24\ns_lshl_b32 {T0}, {SUB}, 22\ns_add_u32 {POOL}, {POOL}, {T0}")
    a(f"s_mul_i32 {T0}, {X_}, {3*NTOT if contig else 3}\ns_add_u32 {T0}, {T0}, s3\ns_sub_u32 {T0}, {T0}, 1\ns_lshl_b32 {T0}, {T0}, 12\ns_add_u32 {CUR}, {POOL}, {T0}")
    a(f"v_lshrrev_b32 v12, 4, v0\nv_lshlrev_b32 v12, 6, v12\nv_bfe_u32 v13, v0, 2, 2\nv_and_b32 v14, 3, v0\nv_lshl_add_u32 v12, v13, 8, v12\nv_lshl_add_u32 {vKO}, v14, 4, v12\nv_lshlrev_b32 {vVO}, 4, v0")
    TSTEP = (3 if contig else 24) * 4096
    S0 = P + E
    NS = S0 + 1
    NSTAT = NTOT - NS
    assert NSTAT >= 1
    perm = [None] * P
    perm[S0 % P] = 0; perm[(S0 + 1) % P] = 1
    fr = iter(range(2, P))
    perm = [p if p is not None else next(fr) for p in perm]
    slot_of = lambda t: perm[t % P]
    assert E <= P - 2
    def issue(slot, i, soff):
        if i < 4: a(f"buffer_load_dwordx4 {kreg(slot, i)}, {vKO}, {sK}, {soff} offen offset:{i*1024} nt")
        else:
            r = vreg(slot, i - 4); a(f"buffer_load_dwordx4 v[{r}:{r+3}], {vVO}, {sV}, {soff} offen offset:{(i-4)*1024} nt")
    st = {"m": 0}
    def issue_group():
        m = st["m"]; t, hf = divmod(m, 2)
        if hf == 0 and t > 0: a(f"s_add_u32 {CUR}, {CUR}, {TSTEP}")
        if m >= 2: a("s_waitcnt vmcnt(4)")
        for i in range(4): issue(slot_of(t), 4 * hf + i, CUR)
        if dbg and m >= 2: a(f"s_memrealtime s[98:99]\ns_waitcnt lgkmcnt(0)\nv_writelane_b32 v246, s98, {m}")
        st["m"] = m + 1
    a("s_waitcnt lgkmcnt(0)")
    if wsb: a(f"s_add_u32 s16, s16, {wsb}\ns_addc_u32 s17, s17, 0\ns_mov_b32 s18, {0x20000000-wsb}")
    if startbar: a("s_barrier")
    CNT, ATT, DD, HB, QS = "s60", "s61", "s31", "s28", "s29"
    TKT = "s86"
    for m in range(2 * P):
        issue_group()
        if m == 1:
            a(f"v_mov_b32 {vM}, 0xff7fffff\nv_mov_b32 {vML}, 0xff7fffff\nv_mov_b32 {vL}, 0\nv_mov_b32 {vS}, 0")
            for r in range(32): a(f"v_mov_b32 v{vOc+r}, 0")
            roles()
            a(f"s_mov_b32 {CNT}, {NSTAT}\nv_mov_b32 v18, {TRG}\ns_mov_b32 {ATT}, {rot}\ns_add_u32 {DD}, s3, {X_}\ns_lshl_b32 {HB}, {H_}, 24\ns_lshl_b32 {T0}, {H_}, 10\ns_add_u32 {T0}, {T0}, {TK}\ns_add_u32 s62, s16, {T0}\ns_addc_u32 s63, s17, 0\ns_mov_b32 {QS}, {SUB}")
            if dbg: a(f"v_writelane_b32 {VDBG}, s96, 0")
    stamp(1)
    a("s_branch L_backlog\n;@@CUT_A\nL_backlog:")
    a("s_barrier")
    a(f"ds_read_b128 v[{vQ}:{vQ+3}], {vVO} offset:{QL}")
    a("s_waitcnt lgkmcnt(0)")
    stamp(2)
    uid = [0]
    def qk_mfma(slot, sg):
        d = vD + 4 * sg
        a(f"v_mfma_f32_16x16x32_bf16 v[{d}:{d+3}], {kreg(slot, sg)}, v[{vQ}:{vQ+3}], 0")
    def qk_dpp(sg, k, tmp):
        d = vD + 4 * sg; u = [u for u in range(4) if u != sg][k]
        src1 = f"v{d+sg}" if k == 0 else tmp
        dst = vS if k == 2 else tmp
        a(f"v_add_f32_dpp {dst}, v{d+u}, {src1} row_ror:{(4*(sg-u))%16} row_mask:0xf bank_mask:{hex(1<<sg)}")
    def softmax(last):
        t = vT[0]; uid[0] += 1
        a(f"v_cvt_pk_bf16_f32 {t}, {vS}, {vS}\nv_lshlrev_b32 {t}, 16, {t}\nv_mul_f32 {t}, {SCALE}, {t}\nv_cvt_pk_bf16_f32 {t}, {t}, {t}\nv_lshlrev_b32 {t}, 16, {t}")
        a(f"v_cmp_gt_f32 vcc, {t}, {vM}\ns_cbranch_vccz L_nr{uid[0]}\ns_call_b64 {RET}, L_rescale\nL_nr{uid[0]}:")
        a(f"v_fma_f32 {t}, {t}, {LOG2E}, -{vML}\nv_exp_f32 {t}, {t}\nv_add_f32 {vL}, {vL}, {t}")
        a(f"v_mov_b32_dpp {vT[1]}, {t} row_ror:12 {FULL}\nv_cvt_pk_bf16_f32 v{vB}, {t}, {vT[1]}\nv_mov_b32_dpp v{vB+1}, v{vB} row_ror:8 {FULL}")
        if last:
            a(f"v_add_f32_dpp v19, {vL}, {vL} row_ror:4 {FULL}\nv_add_f32_dpp v19, v19, v19 row_ror:8 {FULL}")
            for sw in ("16", "32"):
                a(f"v_mov_b32 {vT[2]}, v19\nv_permlane{sw}_swap_b32 {vT[2]}, v19\nv_add_f32 v19, v19, {vT[2]}")
    def pv(slot, sg):
        r0, r1 = vreg(slot, sg - 5), vreg(slot, sg - 4); h = 0 if sg == 5 else 1
        perms = []
        for w in range(4):
            perms.append(f"v_perm_b32 v{vA+2*(2*w)+h}, v{r1+w}, v{r0+w}, {SELL}")
            perms.append(f"v_perm_b32 v{vA+2*(2*w+1)+h}, v{r1+w}, v{r0+w}, {SELH}")
        if sg == 5:
            for p in perms: a(p)
        else:
            mf = [f"v_mfma_f32_16x16x16_bf16 v[{vOc+4*e}:{vOc+4*e+3}], v[{vA+2*e}:{vA+2*e+1}], v[{vB}:{vB+1}], v[{vOc+4*e}:{vOc+4*e+3}]" for e in range(8)]
            for k in range(8):
                a(perms[k])
                if k >= 2: a(mf[k-2])
            a(mf[6]); a(mf[7])
    def kpart(sl, last=False, mid=None):
        for sg in range(4): qk_mfma(sl, sg)
        if mid: mid()
        for k in range(3):
            for sg in range(4): qk_dpp(sg, k, vT[sg])
        softmax(last)
    def vpart(sl, mid=None):
        pv(sl, 5)
        if mid: mid()
        pv(sl, 7)
    final_m = 2 * S0 + 2
    def attempt(n, cnt):
        for _ in range(cnt):
            m = st["m"]
            if m >= final_m or m - 2 * P > n: return
            issue_group()
    def wait_for(n):
        w = 4 * (st["m"] - n - 1)
        assert w >= 0
        if w < 63: a(f"s_waitcnt vmcnt({w})")
    for t in range(S0):
        sl = slot_of(t)
        wait_for(2 * t)
        kpart(sl)
        wait_for(2 * t + 1)
        vpart(sl)
        attempt(2 * t + 1, 99 if t == S0 - 1 else 1)
    assert st["m"] == final_m, (st["m"], final_m)
    stamp(3)
    if dbg: a("s_mov_b32 s93, 16\ns_mov_b32 s94, s98")
    TB = 24 * NTOT
    WOslot = 2
    NWO = 0 if wolate else 8
    vN0, vN1, vA1, vA2, vA3, vA4, vA5, vA6, vXo, vX, vZ, vLW, vLM, vL8, vU0, vU1 = (f"v{r}" for r in range(138, 154))
    SX = 0
    def wo_issue(regbase, so, vo):
        for i in range(8):
            if i: a(f"s_add_u32 {so}, {so}, 16384")
            if abl & 1: a(f"buffer_load_dwordx2 v[{regbase+2*i}:{regbase+2*i+1}], {vZ}, {sX}, 0 offen")
            else: a(f"buffer_load_dwordx2 v[{regbase+2*i}:{regbase+2*i+1}], {vo}, {sO}, {so} offen nt")
    def wo_loads(regbase):
        JR = "s77"
        if remap: a(f"s_lshl_b32 {JR}, {X_}, 2\ns_add_u32 {JR}, {JR}, {SUB}")
        else: a(f"s_mov_b32 {JR}, {J_}")
        a(f"s_lshl_b32 {T0}, {H_}, 2\ns_lshr_b32 {T1}, {JR}, 3\ns_add_u32 {T0}, {T0}, {T1}\ns_lshl_b32 {T2}, {T0}, 3\ns_and_b32 {T1}, {JR}, 4\ns_add_u32 {T1}, {T1}, s3\ns_add_u32 {T2}, {T2}, {T1}")
        a(f"s_lshl_b32 {T0}, {T0}, 7\ns_add_u32 {T0}, {T0}, {T1}\ns_lshl_b32 {T0}, {T0}, 10\ns_and_b32 {T1}, {JR}, 3\ns_lshl_b32 {T3}, {T1}, 8\ns_add_u32 {T0}, {T0}, {T3}")
        a(f"v_lshrrev_b32 {vU0}, 5, v0\nv_and_b32 {vU1}, 31, v0\nv_lshlrev_b32 {vA1}, 13, {vU0}\nv_lshl_add_u32 {vA1}, {vU1}, 3, {vA1}")
        if wolate: a(f"s_mov_b32 s89, {T0}\nv_mov_b32 v154, {vA1}")
        else: wo_issue(regbase, T0, vA1)
        a(f"s_lshr_b32 s78, {T2}, 1\ns_lshl_b32 s78, s78, 12\ns_and_b32 {T0}, {T2}, 1\ns_lshl_b32 {T0}, {T0}, 6\ns_add_u32 s78, s78, {T0}\ns_add_u32 s78, s78, {H1}")
        a(f"s_lshl_b32 s80, {T1}, 16\ns_lshl_b32 {T0}, {H_}, 3\ns_lshr_b32 {T3}, {JR}, 2\ns_add_u32 {T0}, {T0}, {T3}\ns_lshl_b32 {T0}, {T0}, 6\ns_add_u32 s80, s80, {T0}\ns_add_u32 s80, s80, {H2}")
        a(f"s_and_b32 {T0}, {FIN}, 63\ns_lshl_b32 s88, {T0}, 4\ns_lshl_b32 s81, {T0}, 12\ns_add_u32 s81, s81, {H2}\ns_lshl_b32 s87, {T0}, 12\ns_add_u32 s87, s87, {GA}")
        a(f"s_lshl_b32 s76, {H_}, 16\ns_lshl_b32 {T0}, s3, 14\ns_add_u32 s76, s76, {T0}\ns_lshl_b32 {T0}, {J_}, 7\ns_add_u32 s76, s76, {T0}\ns_add_u32 s76, s76, {H1}")
        a("s_mov_b32 s82, 0xaaaaaaaa\ns_mov_b32 s83, 0xaaaaaaaa")
        a(f"v_mov_b32 {vZ}, 0\nds_read_b64 v[138:139], {vZ} offset:{NL}")
        a(f"s_lshl_b32 {T0}, s3, 9\nv_lshl_add_u32 {vA5}, {vU1}, 1, {vU0}\nv_lshl_add_u32 {vA5}, {vA5}, 3, {T0}")
        a(f"v_and_b32 {vU1}, 3, v0\nv_lshl_add_u32 {vXo}, {vU1}, 1, {vU0}\nv_lshlrev_b32 {vXo}, 1, {vXo}")
        a(f"v_lshrrev_b32 {vU0}, 2, v0\nv_lshlrev_b32 {vA6}, 12, {vU0}\nv_lshl_add_u32 {vA6}, {vU1}, 4, {vA6}")
        a(f"s_sub_u32 {T0}, s3, 1\ns_mul_i32 {T1}, {T0}, {OBS}\ns_lshl_b32 {T0}, {T0}, 5\ns_add_u32 {T0}, {T0}, {MLB}")
        a(f"v_lshl_add_u32 {vLM}, {vU1}, 3, {T0}\nv_mul_u32_u24 {vLW}, 528, {vU1}\nv_lshrrev_b32 {vU0}, 4, v0\nv_lshl_add_u32 {vLW}, {vU0}, 4, {vLW}\nv_add_u32 {vLW}, {T1}, {vLW}")
        a(f"v_lshlrev_b32 {vL8}, 3, v0\ns_mul_i32 {T0}, s3, 528\nv_and_b32 {vA1}, 31, v0\nv_lshl_add_u32 {vA1}, {vA1}, 4, {T0}\nv_lshrrev_b32 v156, 2, v0\nv_lshlrev_b32 v156, 7, v156\nv_lshl_add_u32 v156, {vU1}, 4, v156\ns_lshl_b32 {T0}, s3, 3\nv_mov_b32 {vA2}, {T0}\nv_lshlrev_b32 {vA4}, 4, v0")
        a(f"v_lshrrev_b32 {vA3}, 3, v0\nv_and_b32 {vU0}, 7, v0\nv_lshlrev_b32 {vA3}, 12, {vA3}\nv_lshl_add_u32 {vA3}, {vU0}, 4, {vA3}")
    def request():
        a(f"s_add_u32 {DD}, {DD}, 1\ns_and_b32 {QS}, {DD}, 3\ns_cmp_eq_u32 {ATT}, 0\ns_cselect_b32 {QS}, {SUB}, {QS}\ns_lshl_b32 {T0}, {QS}, 13\ns_mov_b32 {TKT}, 1\ns_atomic_add {TKT}, {CTR}, {T0} glc")
    for rho in (0, 1):
        a(f"L_loop{rho}:\ns_waitcnt vmcnt(4)")
        if dbg: a(f"s_waitcnt lgkmcnt(0)\ns_mov_b32 m0, s93\ns_add_u32 s93, s93, 1\nv_writelane_b32 {VDBG}, s94, m0\ns_memrealtime s[94:95]")
        a(f"s_cmp_eq_u32 {CNT}, 0\ns_cbranch_scc1 L_dyn{rho}\ns_add_u32 {CUR}, {CUR}, {TSTEP}\nL_go{rho}:")
        for i in range(4): issue(1 - rho, i, CUR)
        a(f"s_cmp_gt_u32 {CNT}, 1\ns_cbranch_scc1 L_nrq{rho}")
        request()
        a(f"s_mov_b32 {CNT}, 1\nL_nrq{rho}:\ns_sub_u32 {CNT}, {CNT}, 1")
        kpart(rho)
        a("s_waitcnt vmcnt(4)")
        for i in range(4, 8): issue(1 - rho, i, CUR)
        vpart(rho)
        if rot:
            a(f"s_cmp_lg_u32 {CNT}, 0\ns_cbranch_scc1 L_nck{rho}\ns_cmp_eq_u32 {QS}, {SUB}\ns_cbranch_scc1 L_nck{rho}\ns_waitcnt lgkmcnt(0)\ns_cmp_lt_u32 {TKT}, {1024-TB}\ns_cbranch_scc1 L_nck{rho}\ns_mov_b32 {ATT}, 0")
            request()
            a(f"L_nck{rho}:")
    a("s_branch L_loop0")
    vW = vreg(WOslot, 0)
    for rho in (0, 1):
        a(f"L_dyn{rho}:\ns_waitcnt lgkmcnt(0)\ns_add_u32 {T0}, {TKT}, {TB}\ns_cmp_ge_u32 {T0}, {1024-THR}\ns_cbranch_scc1 L_trg{rho}\nL_adr{rho}:\ns_lshl_b32 {T0}, {T0}, 12\ns_lshl_b32 {T1}, {QS}, 22\ns_add_u32 {T0}, {T0}, {T1}\ns_add_u32 {CUR}, {HB}, {T0}\ns_branch L_go{rho}")
        a(f"L_trg{rho}:\nds_write_b32 v18, v18\ns_waitcnt lgkmcnt(0)\ns_cmp_lt_u32 {T0}, 1024\ns_cbranch_scc1 L_adr{rho}")
        a(f"L_drain{rho}:")
        stamp(4)
        wo_loads(vW)
        kpart(rho, last=True)
        a("s_waitcnt vmcnt(2)"); pv(rho, 5)
        a("s_waitcnt vmcnt(0)"); pv(rho, 7)
        if rho == 0: a("s_branch L_fin")
    a("L_fin:")
    wo_issue(vW, "s89", "v154")
    a("s_mov_b32 exec_lo, 0x000f000f\ns_mov_b32 exec_hi, 0x000f000f")
    a(f"ds_write2_b32 {vLM}, {vML}, v19 offset0:0 offset1:1")
    for e in range(8): a(f"ds_write_b128 {vLW}, v[{vOc+4*e}:{vOc+4*e+3}] offset:{OB+64*e}")
    a("s_mov_b64 exec, -1")
    a("s_branch L_tail")

    a("L_rescale:")
    t = vT[0]; u_, w_ = vT[1], vT[2]
    a(f"v_max_f32 {u_}, {t}, {vM}\nv_max_f32_dpp {u_}, {u_}, {u_} row_ror:4 {FULL}\nv_max_f32_dpp {u_}, {u_}, {u_} row_ror:8 {FULL}")
    for sw in ("16", "32"):
        a(f"v_mov_b32 {w_}, {u_}\nv_permlane{sw}_swap_b32 {w_}, {u_}\nv_max_f32 {u_}, {u_}, {w_}")
    a(f"v_mov_b32 {vM}, {u_}\nv_mul_f32 {u_}, {LOG2E}, {u_}\nv_sub_f32 {w_}, {vML}, {u_}\nv_exp_f32 {w_}, {w_}\nv_mov_b32 {vML}, {u_}\nv_mul_f32 {vL}, {vL}, {w_}")
    for r in range(0, 32, 2): a(f"v_pk_mul_f32 v[{vOc+r}:{vOc+r+1}], v[{vOc+r}:{vOc+r+1}], v[14:15] op_sel_hi:[1,0]")
    a(f"s_setpc_b64 {RET}")

    a(";@@SVC_BEGIN\nL_service:\ns_setprio 3")
    vL16, vr, vc = "v2", "v4", "v5"
    a(f"v_lshlrev_b32 {vL16}, 4, v0\nv_lshrrev_b32 {vr}, 3, v0\nv_and_b32 {vc}, 7, v0")
    a(f"v_lshlrev_b32 v6, 17, {vr}\nv_lshl_add_u32 v6, {vc}, 4, v6\nv_mov_b32 v21, 0")
    RB = "s31"
    a(f"s_lshr_b32 {RB}, {J_}, 3\ns_lshl_b32 {T0}, {RB}, 20\ns_lshl_b32 {T2}, {H_}, 10\ns_add_u32 {T0}, {T0}, {T2}\ns_and_b32 {T2}, {J_}, 7\ns_lshl_b32 {T2}, {T2}, 7\ns_add_u32 {T0}, {T0}, {T2}")
    a(f"s_lshl_b32 {T1}, {A_}, 10\ns_add_u32 {T1}, {T1}, {TK}\ns_lshl_b32 {T2}, {X_}, 7\ns_add_u32 {T1}, {T1}, {T2}\ns_mov_b32 {T2}, {NON}")
    a("s_waitcnt lgkmcnt(0)")
    if wsb: a(f"s_add_u32 s16, s16, {wsb}\ns_addc_u32 s17, s17, 0\ns_mov_b32 s18, {0x20000000-wsb}")
    a(f"s_cmp_lg_u32 {X_}, 0\ns_cbranch_scc1 L_noini\ns_mov_b64 exec, 1\nbuffer_store_dword v21, v21, {sW}, {T1} offen sc1\ns_mov_b64 exec, -1\nL_noini:")
    a(f"buffer_load_dwordx4 v[8:11], {vL16}, {sX}, 0 offen")
    WB = 64
    for i in range(16):
        if i: a(f"s_add_u32 {T0}, {T0}, 8192")
        a(f"buffer_load_dwordx4 v[{WB+4*i}:{WB+4*i+3}], v6, {sQ}, {T0} offen nt")
    a(f"buffer_load_dwordx2 v[58:59], v21, {sW}, {T2} offen sc1")
    if startbar: a("s_barrier")
    if dbg: a(f"v_writelane_b32 {VDBG}, s96, 0")
    NST = 1
    roles()
    def allreduce(r, tmp, op="v_add_f32"):
        for n in (8, 4, 2, 1): a(f"{op}_dpp {r}, {r}, {r} row_ror:{n} {FULL}")
        for sw in ("16", "32"): a(f"v_mov_b32 {tmp}, {r}\nv_permlane{sw}_swap_b32 {tmp}, {r}\n{op} {r}, {r}, {tmp}")
    def bfr(r, src=None): a(f"v_cvt_pk_bf16_f32 {r}, {src or r}, {src or r}\nv_lshlrev_b32 {r}, 16, {r}")
    a(f"v_bfe_u32 v22, v0, 5, 1\nv_bfe_u32 v23, v0, 4, 1\nv_lshlrev_b32 v22, 2, v22\nv_lshl_add_u32 v22, v23, 1, v22\nv_bfe_u32 v23, v0, 3, 1\nv_add_u32 v22, v22, v23\nv_lshl_add_u32 v22, {vc}, 3, v22\nv_lshlrev_b32 v23, 3, v22")
    a(f"s_lshl_b32 {T0}, {RB}, 8\nv_lshl_add_u32 v20, {vr}, 5, {T0}")
    a(f"s_waitcnt vmcnt({16+NST})")
    for w in range(4): a(f"v_lshlrev_b32 v{24+2*w}, 16, v{8+w}\nv_and_b32 v{25+2*w}, 0xffff0000, v{8+w}")
    a("v_add_f32 v32, v24, v25\nv_add_f32 v33, v26, v27\nv_add_f32 v34, v28, v29\nv_add_f32 v35, v30, v31\nv_add_f32 v32, v32, v33\nv_add_f32 v34, v34, v35\nv_add_f32 v32, v32, v34")
    allreduce("v32", "v33")
    a(f"v_mul_f32 v32, {fhex(1/512)}, v32")
    for i in range(8): a(f"v_sub_f32 v{40+i}, v{24+i}, v32")
    a("v_mul_f32 v34, v40, v40\nv_mul_f32 v35, v41, v41")
    for i in range(2, 8): a(f"v_fmac_f32 v{34+(i&1)}, v{40+i}, v{40+i}")
    a("v_add_f32 v34, v34, v35")
    allreduce("v34", "v33")
    a(f"v_mul_f32 v34, {fhex(1/512)}, v34")
    bfr("v32"); bfr("v34")
    a(f"v_add_f32 v34, {fhex(1e-5)}, v34"); bfr("v34")
    a("v_sqrt_f32 v34, v34"); bfr("v34"); a("v_rcp_f32 v34, v34")
    for i in range(8): a(f"v_sub_f32 v{40+i}, v{24+i}, v32")
    for w in range(4): a(f"v_cvt_pk_bf16_f32 v{48+w}, v{40+2*w}, v{41+2*w}")
    for w in range(4): a(f"v_lshlrev_b32 v{40+2*w}, 16, v{48+w}\nv_and_b32 v{41+2*w}, 0xffff0000, v{48+w}")
    for i in range(8): a(f"v_mul_f32 v{40+i}, v{40+i}, v34")
    for w in range(4): a(f"v_cvt_pk_bf16_f32 v{48+w}, v{40+2*w}, v{41+2*w}")
    a(f"ds_write_b128 {vL16}, v[48:51] offset:{XN}")
    a(f"s_waitcnt lgkmcnt(0)\nds_read_b128 v[24:27], v20 offset:{XN}\nds_read_b128 v[28:31], v20 offset:{XN+16}\ns_waitcnt lgkmcnt(0)")
    stamp(1)
    ACC = 40
    def pairdot(r0, r1, xp, acc, first, tmps=("v60", "v61", "v62", "v63")):
        for w in range(4):
            for hh, sel in ((0, SELL), (1, SELH)):
                tm = tmps[(2*w+hh) % len(tmps)]
                a(f"v_perm_b32 {tm}, v{r1+w}, v{r0+w}, {sel}")
                a(f"v_dot2_f32_bf16 v{acc+2*w+hh}, {tm}, {xp}, {'0' if first else 'v%d' % (acc+2*w+hh)}")
    for k in range(8):
        a(f"s_waitcnt vmcnt({16-2*k-2+NST})")
        pairdot(WB + 8*k, WB + 8*k + 4, f"v{24+k}", ACC, k == 0)
    def redscat8(acc, out):
        for e in range(4): a(f"v_permlane32_swap_b32 v{acc+e}, v{acc+e+4}")
        for e in range(4): a(f"v_add_f32 v{acc+e}, v{acc+e}, v{acc+e+4}")
        for e in range(2): a(f"v_permlane16_swap_b32 v{acc+e}, v{acc+e+2}")
        for e in range(2): a(f"v_add_f32 v{acc+e}, v{acc+e}, v{acc+e+2}")
        if out:
            a(f"v_add_f32_dpp {out}, v{acc}, v{acc} row_ror:8 row_mask:0xf bank_mask:0x3\nv_add_f32_dpp {out}, v{acc+1}, v{acc+1} row_ror:8 row_mask:0xf bank_mask:0xc")
    redscat8(ACC, None)
    a(f"s_lshl_b32 {T3}, {H_}, 14\ns_lshl_b32 {T2}, {J_}, 9\ns_add_u32 {T0}, {T3}, {T2}")
    assert QP == 0
    a(f"v_add_f32_dpp v56, v{ACC}, v{ACC} row_ror:8 {FULL}\nv_add_f32_dpp v57, v{ACC+1}, v{ACC+1} row_ror:8 {FULL}")
    a("s_waitcnt vmcnt(0)\nv_add_co_u32 v58, vcc, 1, v58\nv_addc_co_u32 v59, vcc, 0, v59, vcc")
    a(f"s_mov_b32 exec_lo, 0x00ff00ff\ns_mov_b32 exec_hi, 0x00ff00ff\nbuffer_store_dwordx4 v[56:59], v23, {sW}, {T0} offen sc1\ns_mov_b64 exec, -1")
    stamp(2)
    a(f"ds_write_b64 v21, v[58:59] offset:{NL}\nds_write_b32 v21, v21 offset:{TRG}")
    def tagcheck(regs, acc):
        first = True
        for r in regs:
            if first: a(f"v_xor_b32 {acc}, v{r}, v58"); first = False
            else: a(f"v_bitop3_b32 {acc}, v{r}, v58, {acc} bitop3:0xbe")
            a(f"v_bitop3_b32 {acc}, v{r+1}, v59, {acc} bitop3:0xbe")
    a(f"s_mov_b32 {SPN}, {SPIN}")
    if prepoll:
        a(f"v_and_b32 v34, 31, v0\nv_lshlrev_b32 v34, 9, v34\nL_pollq0:\nbuffer_load_dwordx2 v[32:33], v34, {sW}, {T3} offen offset:504 sc1")
        a(f"s_sub_u32 {SPN}, {SPN}, 1\ns_cbranch_scc1 L_pollq\ns_waitcnt vmcnt(0)")
        tagcheck([32], "v35")
        a("v_cmp_ne_u32 vcc, 0, v35\ns_cbranch_vccnz L_pollq0")
    a(f"L_pollq:\ns_mov_b32 {T0}, {T3}")
    for rb in range(4):
        if rb: a(f"s_add_u32 {T0}, {T0}, 4096")
        for k in range(4): a(f"buffer_load_dwordx4 v[{WB+16*rb+4*k}:{WB+16*rb+4*k+3}], {vL16}, {sW}, {T0} offen offset:{1024*k} sc1")
    a(f"s_sub_u32 {SPN}, {SPN}, 1\ns_cbranch_scc1 L_pollq_done\ns_waitcnt vmcnt(0)")
    tagcheck([WB + 4 * k + 2 for k in range(16)], "v33")
    a("v_cmp_ne_u32 vcc, 0, v33\ns_cbranch_vccnz L_pollq\nL_pollq_done:\ns_waitcnt vmcnt(0)")
    stamp(4)
    for k in range(4):
        for e in range(2):
            r = WB + 4 * k + e
            a(f"v_add_f32 v{r}, v{r}, v{r+16}\nv_add_f32 v{r+32}, v{r+32}, v{r+48}\nv_add_f32 v{r}, v{r}, v{r+32}")
    a("v_lshrrev_b32 v34, 2, v0\nv_and_b32 v35, 3, v0\nv_lshlrev_b32 v34, 6, v34\nv_lshl_add_u32 v34, v35, 2, v34")
    for w in range(4): a(f"v_cvt_pk_bf16_f32 v{48+w}, v{WB+4*w}, v{WB+4*w+1}")
    for w in range(4): a(f"ds_write_b32 v34, v{48+w} offset:{QL+16*w}")
    a(f"s_waitcnt lgkmcnt(0)\ns_barrier\ns_setprio {gprio}")
    a("s_branch L_svc2\n;@@SVC_END\nL_svc2:")
    stamp(5)
    def silu_bf(r, tmp):
        a(f"v_mul_f32 {tmp}, {LOG2E}, {r}\nv_exp_f32 {tmp}, -{tmp}\nv_add_f32 {tmp}, 1.0, {tmp}\nv_rcp_f32 {tmp}, {tmp}\nv_mul_f32 {r}, {r}, {tmp}"); bfr(r)
    a("s_waitcnt lgkmcnt(0)")
    wo_loads(vW)
    a(f"v_mul_u32_u24 v6, {8*3584}, {vr}\nv_lshl_add_u32 v6, {vc}, 4, v6\ns_mul_i32 s28, {X_}, {64*3584}\ns_lshl_b32 {T1}, {A_}, 7\ns_add_u32 s28, s28, {T1}")
    a(f"s_lshl_b32 {T1}, {X_}, 7\nv_lshl_add_u32 v7, {vr}, 4, {T1}\nds_read_b128 v[24:27], v7 offset:{XN}\nv_lshlrev_b32 v23, 4, v22\nv_lshlrev_b32 v7, 2, v0")
    a(f"s_lshl_b32 s29, {A_}, 13\ns_add_u32 s29, s29, {GP1}\ns_lshl_b32 {T1}, {X_}, 10\ns_add_u32 s30, s29, {T1}")
    a(f"s_lshr_b32 {T1}, {X_}, 2\ns_lshl_b32 {T2}, {T1}, 9\ns_add_u32 s29, s29, {T2}\ns_lshl_b32 {T2}, {A_}, 1\ns_add_u32 {T2}, {T2}, {T1}")
    a(f"s_and_b32 {T1}, {X_}, 3\ns_lshl_b32 s31, {T2}, 15\ns_lshl_b32 {T3}, {T1}, 8\ns_add_u32 s31, s31, {T3}\ns_lshl_b32 s61, {T1}, 16\ns_lshl_b32 {T2}, {T2}, 6\ns_add_u32 s61, s61, {T2}\ns_add_u32 s61, s61, {GA}")
    a("v_and_b32 v155, 31, v0\nv_lshrrev_b32 v33, 5, v0\nv_lshlrev_b32 v155, 4, v155\nv_lshl_add_u32 v155, v33, 10, v155")
    W2R, W2P = 160, 192
    a(f"s_cmp_ge_u32 {A_}, 28\ns_cbranch_scc1 L_noglu1")
    for k in range(4):
        b = WB + 16 * k
        if k: a(f"s_add_u32 s28, s28, 7168")
        a(f"buffer_load_dwordx4 v[{b}:{b+3}], v6, {s1}, s28 offen nt\nbuffer_load_dwordx4 v[{b+4}:{b+7}], v6, {s1}, s28 offen offset:3584 nt")
        a(f"buffer_load_dwordx4 v[{b+8}:{b+11}], v6, {s3_}, s28 offen nt\nbuffer_load_dwordx4 v[{b+12}:{b+15}], v6, {s3_}, s28 offen offset:3584 nt")
    for k in range(4):
        b = WB + 16 * k
        a(f"s_waitcnt vmcnt({12-4*k}) lgkmcnt(0)")
        pairdot(b, b + 4, f"v{24+k}", ACC, k == 0); pairdot(b + 8, b + 12, f"v{24+k}", ACC + 8, k == 0)
    redscat8(ACC, "v56"); redscat8(ACC + 8, "v57")
    def w2_loads():
        for i in range(32):
            if i and i % 4 == 0: a(f"s_add_u32 s31, s31, 4096")
            a(f"buffer_load_dword v{W2R+i}, v7, {s2_}, s31 offen offset:{1024*(i%4)} nt")
    if w2early: w2_loads()
    a("L_noglu1:")
    stamp(6)
    a(f"s_mov_b32 {SPN}, {SPIN*8}\nL_wtrg:\ns_sleep {tsleep}\nds_read_b32 v33, v21 offset:{TRG}\ns_sub_u32 {SPN}, {SPN}, 1\ns_cbranch_scc1 L_wtrg_done\ns_waitcnt lgkmcnt(0)\nv_cmp_eq_u32 vcc, 0, v33\ns_cbranch_vccnz L_wtrg\nL_wtrg_done:\ns_waitcnt lgkmcnt(0)")
    stamp(7)
    a(f"s_cmp_ge_u32 {A_}, 28\ns_cbranch_scc1 L_noglu2")
    a(f"buffer_store_dwordx4 v[56:59], v23, {sW}, s30 offen sc1\ns_add_u32 s30, s29, 4096\ns_mov_b32 {SPN}, {SPIN}")
    if not w2early: w2_loads()
    a(f"v_mov_b32 v96, 0\nv_mov_b32 v97, 0\nv_mov_b32 v98, 0\nv_mov_b32 v99, 0\nv_mov_b32 v102, {vN0}\nv_mov_b32 v103, {vN1}\nL_pollh:")
    for i in range(4): a(f"buffer_load_dwordx4 v[{72+4*i}:{75+4*i}], v155, {sW}, {('s29','s30')[i>>1]} offen offset:{2048*(i&1)} sc1")
    a(f"s_sub_u32 {SPN}, {SPN}, 1\ns_cbranch_scc1 L_pollh_done\ns_waitcnt vmcnt(0)")
    tagcheck([74, 78, 82, 86], "v88")
    a("v_cmp_ne_u32 vcc, 0, v88\ns_cbranch_vccnz L_pollh\nL_pollh_done:\ns_waitcnt vmcnt(0)")
    for k in range(16): a(f"v_perm_b32 v{W2P+2*k}, v{W2R+2*k+1}, v{W2R+2*k}, {SELL}\nv_perm_b32 v{W2P+2*k+1}, v{W2R+2*k+1}, v{W2R+2*k}, {SELH}")
    a("v_add_f32 v88, v72, v76\nv_add_f32 v89, v73, v77\nv_add_f32 v90, v80, v84\nv_add_f32 v91, v81, v85")
    a("v_add_f32 v88, v88, v90\nv_add_f32 v89, v89, v91\nv_permlane32_swap_b32 v88, v89\nv_add_f32 v89, v88, v89\nv_mov_b32 v88, v89\nv_permlane32_swap_b32 v88, v89")
    bfr("v88"); bfr("v89"); silu_bf("v88", "v90")
    a(f"v_mul_f32 v88, v88, v89\nv_mov_b32_dpp v89, v88 quad_perm:[1,1,3,3] {FULL}\nv_cvt_pk_bf16_f32 v89, v88, v89\nv_mov_b32 v88, v89\nv_permlane16_swap_b32 v88, v89")
    for k in range(16):
        for c in range(2): a(f"v_dot2c_f32_bf16_dpp v{96+2*(k&1)+c}, v{88+(k>>3)}, v{W2P+2*k+c} row_newbcast:{2*(k&7)} {FULL}")
    a(f"v_add_f32 v100, v96, v98\nv_add_f32 v101, v97, v99")
    a("L_noglu2:")
    wo_issue(vW, "s89", "v154")
    stamp(3)
    def red2(c, tmp):
        a(f"v_permlane32_swap_b32 v{c}, v{c+1}\nv_add_f32 v{c}, v{c}, v{c+1}\nv_mov_b32 {tmp}, v{c}\nv_permlane16_swap_b32 {tmp}, v{c}\nv_add_f32 v{c}, v{c}, {tmp}")
        a(f"v_add_f32_dpp v{c}, v{c}, v{c} row_ror:4 {FULL}\nv_add_f32_dpp v{c}, v{c}, v{c} row_ror:8 {FULL}")
    a("L_tail:")
    a(f"s_waitcnt lgkmcnt(0)\nv_mov_b32 v39, {vN0}\ns_barrier")
    stamp(8)
    for s_ in range(3): a(f"ds_read_b64 v[{20+2*s_}:{21+2*s_}], {vA2} offset:{MLB+32*s_}")
    for s_ in range(3): a(f"ds_read_b128 v[{72+4*s_}:{75+4*s_}], {vA1} offset:{OB+OBS*s_}")
    a("s_waitcnt lgkmcnt(3)\nv_max3_f32 v32, v20, v22, v24")
    for s_ in range(3): a(f"v_sub_f32 v{20+2*s_}, v{20+2*s_}, v32")
    for s_ in range(3): a(f"v_exp_f32 v{20+2*s_}, v{20+2*s_}")
    a("v_mul_f32 v33, v21, v20\nv_fmac_f32 v33, v23, v22\nv_fmac_f32 v33, v25, v24\ns_mov_b32 exec_hi, 0")
    a("s_waitcnt lgkmcnt(1)")
    for i in range(4): a(f"v_mul_f32 v{72+i}, v{72+i}, v20")
    for i in range(4): a(f"v_fmac_f32 v{72+i}, v{76+i}, v22")
    a("v_cndmask_b32 v38, v32, v33, s[82:83]\ns_waitcnt lgkmcnt(0)")
    for i in range(4): a(f"v_fmac_f32 v{72+i}, v{80+i}, v24")
    a("v_cvt_pk_bf16_f32 v36, v72, v73\nv_cvt_pk_bf16_f32 v37, v74, v75")
    a(f"buffer_store_dwordx4 v[36:39], {vA3}, {sW}, s76 offen {h1fl}\ns_mov_b64 exec, -1")
    stamp(9)
    if wolate == 1: wo_issue(vW, "s89", "v154")
    def h1_load(i): a(f"buffer_load_dwordx4 v[{20+4*i}:{23+4*i}], v156, {sW}, s78 offen offset:{2048*i} {h1ld}")
    PW = 52
    for i in range(2): h1_load(i)
    a(f"s_mov_b32 {SPN}, {SPIN}\nv_mov_b32 v44, 0\nv_mov_b32 v45, 0\nv_mov_b32 v46, 0\nv_mov_b32 v47, 0\nv_mov_b32 v70, {vN0}\nv_mov_b32 v71, {vN1}\ns_waitcnt vmcnt(3)")
    for i in range(8): a(f"v_permlane32_swap_b32 v{vW+2*i}, v{vW+2*i+1}")
    for i in range(8): a(f"v_perm_b32 v{PW+2*i}, v{vW+2*i+1}, v{vW+2*i}, {SELL}\nv_perm_b32 v{PW+2*i+1}, v{vW+2*i+1}, v{vW+2*i}, {SELH}")
    a(f"s_cmp_lg_u32 s3, 0\ns_cbranch_scc1 L_poll1\ns_cmp_ge_u32 {A_}, 28\ns_cbranch_scc1 L_poll1")
    a(f"buffer_store_dwordx4 v[100:103], {vA6}, {sW}, s61 offen sc1\ns_waitcnt vmcnt(1)\ns_branch L_poll1c")
    CM = ["s[90:91]", "s[92:93]", "s[94:95]", "s[84:85]"]
    def repoll(name, loadf, n):
        if n == 4: a(f"s_or_b64 s[66:67], {CM[0]}, {CM[1]}\ns_or_b64 s[68:69], {CM[2]}, {CM[3]}\ns_or_b64 s[66:67], s[66:67], s[68:69]\ns_cbranch_scc0 {name}_done")
        else: a(f"s_or_b64 s[66:67], {CM[0]}, {CM[1]}\ns_cbranch_scc0 {name}_done")
        a(f"s_sub_u32 {SPN}, {SPN}, 1\ns_cbranch_scc1 {name}_done")
        if psl and name == "L_poll1": a(f"s_sleep {psl}")
        for i in range(n):
            if partial: a(f"s_cmp_eq_u64 {CM[i]}, 0\ns_cbranch_scc1 {name}_s{i}")
            loadf(i)
            if partial: a(f"{name}_s{i}:")
        a(f"s_branch {name}\n{name}_done:")
    a("L_poll1:\ns_waitcnt vmcnt(0)\nL_poll1c:")
    for i in range(2): a(f"v_cmp_ne_u32 {CM[i]}, v{23+4*i}, {vN0}")
    for i in range(2): a(f"v_mov_b32_dpp v{36+i}, v{22+4*i} quad_perm:[0,0,2,2] {FULL}")
    a("v_lshlrev_b32 v28, 16, v20\nv_max_f32 v41, v36, v37\nv_and_b32 v29, 0xffff0000, v20\nv_lshlrev_b32 v30, 16, v21")
    repoll("L_poll1", h1_load, 2)
    stamp(10)
    a(f"v_max_f32_dpp v41, v41, v41 row_ror:4 {FULL}\nv_and_b32 v31, 0xffff0000, v21\nv_lshlrev_b32 v32, 16, v24\nv_max_f32_dpp v41, v41, v41 row_ror:8 {FULL}")
    a("v_mov_b32 v42, v41\nv_and_b32 v33, 0xffff0000, v24\nv_lshlrev_b32 v34, 16, v25\nv_permlane16_swap_b32 v42, v41\nv_max_f32 v41, v41, v42")
    a("v_mov_b32 v42, v41\nv_and_b32 v35, 0xffff0000, v25\ns_nop 0\nv_permlane32_swap_b32 v42, v41\nv_max_f32 v41, v41, v42")
    a("v_sub_f32 v36, v36, v41\nv_sub_f32 v37, v37, v41\nv_exp_f32 v36, v36\nv_exp_f32 v37, v37")
    for r in (28, 29, 30, 31, 22): a(f"v_mul_f32 v{r}, v{r}, v36")
    for r in (28, 29, 30, 31, 22): a(f"v_fmac_f32 v{r}, v{r+4}, v37")
    a("v_permlane32_swap_b32 v28, v29\nv_mov_b32 v26, v22\nv_permlane32_swap_b32 v30, v31\nv_add_f32 v28, v28, v29\nv_permlane32_swap_b32 v26, v22\nv_add_f32 v30, v30, v31\nv_add_f32 v22, v22, v26")
    a("v_mov_b32 v26, v22\nv_permlane16_swap_b32 v28, v30\nv_add_f32 v28, v28, v30\nv_permlane16_swap_b32 v26, v22\nv_add_f32 v22, v22, v26")
    for n in (4, 8): a(f"v_add_f32_dpp v28, v28, v28 row_ror:{n} {FULL}\nv_add_f32_dpp v22, v22, v22 row_ror:{n} {FULL}")
    a(f"v_rcp_f32_dpp v22, v22 quad_perm:[1,1,3,3] {FULL}\nv_mul_f32 v28, v28, v22\nv_mov_b32 v29, v28\nv_permlane32_swap_b32 v29, v28\nv_cvt_pk_bf16_f32 v28, v29, v28\nv_mov_b32 v29, v28\nv_permlane16_swap_b32 v29, v28")
    for k in range(8):
        for c in range(2): a(f"v_dot2c_f32_bf16_dpp v{44+2*(k&1)+c}, v{29-(k&1)}, v{PW+2*k+c} row_newbcast:{k>>1} {FULL}")
    a(f"v_add_f32 v44, v44, v46\nv_add_f32 v45, v45, v47\nds_write_b64 {vA5}, v[44:45] offset:{SX}\ns_waitcnt lgkmcnt(0)\ns_barrier")
    a("s_cmp_lg_u32 s3, 0\ns_cbranch_scc1 L_notpub")
    for w in range(4): a(f"ds_read_b64 v[{20+2*w}:{21+2*w}], {vL8} offset:{SX+512*w}")
    a("s_waitcnt lgkmcnt(2)\nv_add_f32 v20, v20, v22\nv_add_f32 v21, v21, v23\ns_waitcnt lgkmcnt(0)\nv_add_f32 v24, v24, v26\nv_add_f32 v25, v25, v27\nv_add_f32 v68, v20, v24\nv_add_f32 v69, v21, v25")
    a(f"buffer_store_dwordx4 v[68:71], {vA6}, {sW}, s80 offen sc1")
    stamp(11)
    a("s_branch L_done\nL_notpub:")
    a(f"s_cmp_lg_u32 s3, 1\ns_cbranch_scc1 L_done\ns_cmp_eq_u32 {FIN}, -1\ns_cbranch_scc1 L_done")
    a(f"v_mov_b32 v84, 0\nv_mov_b32 v85, 0\nv_mov_b32 v86, {vN0}\nv_mov_b32 v87, {vN1}\ns_mov_b32 {SPN}, {SPIN}")
    def g_load(i):
        if i == 3: a("s_mov_b32 exec_hi, 0")
        a(f"buffer_load_dwordx4 v[{72+4*i}:{75+4*i}], {vA4}, {sW}, s87 offen offset:{1024*i} sc1")
        if i == 3: a("s_mov_b64 exec, -1")
    a(f"buffer_load_ushort {vX}, {vXo}, {sX}, s88 offen")
    for i in range(4): g_load(i)
    a("L_pollg:\ns_waitcnt vmcnt(0)")
    for i in range(4): a(f"v_cmp_ne_u64 {CM[i]}, v[{74+4*i}:{75+4*i}], v[138:139]")
    a("v_add_f32 v42, v72, v76\nv_add_f32 v43, v73, v77\nv_add_f32 v40, v80, v84\nv_add_f32 v41, v81, v85")
    repoll("L_pollg", g_load, 4)
    a("v_add_f32 v42, v42, v40\nv_add_f32 v43, v43, v41")
    def h2_load(i): a(f"buffer_load_dwordx4 v[{20+4*i}:{23+4*i}], {vA4}, {sW}, s81 offen offset:{1024*i} sc1")
    for i in range(4): h2_load(i)
    red2(42, "v41")
    bfr("v42"); silu_bf("v42", "v43"); a(f"v_lshlrev_b32 {vX}, 16, {vX}")
    stamp(15)
    a(f"s_mov_b32 {SPN}, {SPIN}\nL_poll2:\ns_waitcnt vmcnt(0)")
    for i in range(4): a(f"v_cmp_ne_u64 {CM[i]}, v[{22+4*i}:{23+4*i}], v[138:139]")
    a("v_add_f32 v38, v20, v24\nv_add_f32 v39, v21, v25\nv_add_f32 v36, v28, v32\nv_add_f32 v37, v29, v33")
    repoll("L_poll2", h2_load, 4)
    stamp(12)
    a("v_add_f32 v20, v38, v36\nv_add_f32 v21, v39, v37")
    red2(20, "v22")
    bfr("v20"); a("v_mul_f32 v20, v20, v42"); bfr("v20"); a(f"v_add_f32 v20, v20, {vX}\nv_cvt_pk_bf16_f32 v20, v20, v20")
    a(f"s_mov_b32 exec_lo, 15\ns_mov_b32 exec_hi, 15\nbuffer_store_short v20, {vXo}, {sY}, s88 offen\ns_mov_b64 exec, 1")
    a(f"s_cmp_lg_u32 {FIN}, 0\ns_cbranch_scc1 L_nonon\ns_mov_b32 {T0}, {NON}\nbuffer_store_dwordx2 v[138:139], {vZ}, {sW}, {T0} offen sc1\nL_nonon:\ns_mov_b64 exec, -1")
    a("L_done:")
    if dbg:
        stamp(13)
        a("s_getreg_b32 s98, hwreg(HW_REG_XCC_ID)")
        a(f"v_writelane_b32 {VDBG}, s98, 14")
        a(f"s_lshl_b32 {T0}, s2, 2\ns_add_u32 {T0}, {T0}, s3\ns_lshl_b32 {T0}, {T0}, 8\ns_add_u32 {T0}, {T0}, {DBG}\ns_sub_u32 s16, s16, {wsb}\ns_subb_u32 s17, s17, 0\nv_lshlrev_b32 v12, 2, v0\nbuffer_store_dword {VDBG}, v12, {sW}, {T0} offen\ns_add_u32 {T0}, {T0}, 0x40000\nbuffer_store_dword v246, v12, {sW}, {T0} offen")
    a("L_end:\ns_endpgm")
    if relayout:
        i0, i1, ic = a.L.index(";@@SVC_BEGIN"), a.L.index(";@@SVC_END"), a.L.index(";@@CUT_A")
        a.L = a.L[:ic] + a.L[i0:i1] + a.L[ic:i0] + a.L[i1:]
    a.L = [l for l in a.L if not l.startswith(";@@")]
    a.pad()
    a('.section .rodata,"a"\n.p2align 6')
    a(f".amdhsa_kernel {KN}_kernel")
    a("""  .amdhsa_next_free_vgpr 512
  .amdhsa_next_free_sgpr 102
  .amdhsa_accum_offset 256
  .amdhsa_group_segment_fixed_size 0
  .amdhsa_kernarg_size 96
  .amdhsa_user_sgpr_count 2
  .amdhsa_user_sgpr_kernarg_segment_ptr 1
  .amdhsa_system_sgpr_workgroup_id_x 1
  .amdhsa_float_denorm_mode_32 3
.end_amdhsa_kernel""")
    return a.text()
if __name__ == "__main__":
    kw = eval("dict(%s)" % (sys.argv[2] if len(sys.argv) > 2 else ""))
    open(sys.argv[1], "w").write(gen(**kw))
```

```python
import sys
from asmlib import *
KN = "recurrent_scan__gqa_block_cached__glu_gated_swiglu__decode"
QP, TK, NON, GP1, GA, H1, H2, DBG = 0x0, 0x20000, 0x28000, 0x30000, 0x70000, 0x100000, 0x200000, 0x400000
XN, QL, NL, TRG, QT, TR2, MLB, OB = 0, 1024, 2048, 2056, 2060, 2064, 2080, 2176
SX = 0
OBS = 2112
LDS_BYTES = OB + 3 * OBS
SPIN = 1 << 20
FULL = "row_mask:0xf bank_mask:0xf"

def gen(P=7, E=4, NTOT=37, THR=26, MQ=7, dbg=False, wsb=0x1f000000, tsleep=4, gearly=False, al=0, h2o=2, h2s=0, h1s=1, THH=36, ckearly=True, nearly=True, outsc='sc1', gth=4, noq=0, THR2=0, w2late=False):
    a = Asm()
    hdr = open("cdna_kernels/" + KN + ".s.ref").read().split("; Override launch")[0]
    a.L += hdr.rstrip().split("\n")
    a(f"; @launch grid=(256,1,1) block=(256,1,1) lds={LDS_BYTES}")
    a('.amdgcn_target "amdgcn-amd-amdhsa--gfx950"\n.text')
    if al: a(f".p2align {al}")
    a(f".globl {KN}_kernel\n.p2align 8\n.type {KN}_kernel,@function\n{KN}_kernel:")
    sK, sV, sW, sO = "s[8:11]", "s[12:15]", "s[16:19]", "s[20:23]"
    sQ, sX, sY, s1, s3_, s2_ = "s[24:27]", "s[32:35]", "s[36:39]", "s[40:43]", "s[44:47]", "s[48:51]"
    X_, A_, H_, SUB, J_, FIN = "s52", "s53", "s54", "s55", "s56", "s59"
    CUR, CNT, ATT, DD, HB, QS, TKT = "s30", "s60", "s61", "s31", "s28", "s29", "s86"
    CTR, RET = "s[62:63]", "s[64:65]"
    T0, T1, T2, T3 = "s66", "s67", "s68", "s69"
    SELL, SELH, SCALE, LOG2E, SPN, JR = "s70", "s71", "s72", "s73", "s74", "s77"
    CM = ["s[90:91]", "s[92:93]", "s[94:95]", "s[84:85]"]
    VDBG = "v3"
    def stamp(k):
        if dbg: a(f"s_memrealtime s[98:99]\ns_waitcnt lgkmcnt(0)\nv_writelane_b32 {VDBG}, s98, {k}")
    def srd(base, n): a(f"s_mov_b32 s{base+2}, {hex(n)}\ns_mov_b32 s{base+3}, 0x20000")
    def bfr(r): a(f"v_cvt_pk_bf16_f32 {r}, {r}, {r}\nv_lshlrev_b32 {r}, 16, {r}")
    def silu_bf(r, tmp):
        a(f"v_mul_f32 {tmp}, {LOG2E}, {r}\nv_exp_f32 {tmp}, -{tmp}\nv_add_f32 {tmp}, 1.0, {tmp}\nv_rcp_f32 {tmp}, {tmp}\nv_mul_f32 {r}, {r}, {tmp}"); bfr(r)
    a(f"s_lshr_b32 {A_}, s2, 3\ns_cmp_ge_u32 {A_}, 32\ns_cbranch_scc1 L_end")
    for base, off in ((8, 8), (12, 16), (24, 24), (32, 0), (16, 88)): a(f"s_load_dwordx2 s[{base}:{base+1}], s[0:1], {off}")
    a("v_readfirstlane_b32 s3, v0\nv_and_b32 v0, 63, v0")
    if dbg: a("s_memrealtime s[96:97]")
    a(f"s_and_b32 {X_}, s2, 7\ns_and_b32 {H_}, {A_}, 7\ns_lshr_b32 {SUB}, {A_}, 3\ns_lshr_b32 s3, s3, 6\ns_cbranch_scc1 L_stream")
    def late_setup():
        for base, off in ((20, 32), (36, 72), (40, 48), (44, 56), (48, 64)): a(f"s_load_dwordx2 s[{base}:{base+1}], s[0:1], {off}")
        for base, n in ((20, 0x400000), (36, 1024), (40, 512*3584), (44, 512*3584), (48, 1792*1024)): srd(base, n)
        a(f"s_mov_b32 {SELL}, 0x05040100\ns_mov_b32 {SELH}, 0x07060302\ns_mov_b32 {SCALE}, {fhex(128**-0.5)}\ns_mov_b32 {LOG2E}, {fhex(1.4426950408889634)}")
        a(f"s_lshl_b32 {J_}, {SUB}, 3\ns_add_u32 {J_}, {J_}, {X_}\ns_lshl_b32 {JR}, {X_}, 2\ns_add_u32 {JR}, {JR}, {SUB}")
        a(f"s_sub_u32 {T0}, {X_}, {A_}\ns_and_b32 {T0}, {T0}, 7\ns_lshl_b32 {T1}, {A_}, 1\ns_add_u32 {T2}, {T1}, 1")
        a(f"s_cmp_eq_u32 {T0}, 4\ns_cselect_b32 {FIN}, {T1}, -1\ns_cmp_eq_u32 {T0}, 2\ns_cselect_b32 {FIN}, {T2}, {FIN}")
    vL16, vr, vc, WB, ACC = "v2", "v4", "v5", 64, 40
    a(f"s_getpc_b64 s[4:5]\nL_pc:\ns_lshl_b32 s6, {A_}, 7\nv_lshl_add_u32 v2, v0, 12, s6\nv_cmp_gt_u32 vcc, L_end-L_pc, v2\ns_setprio 3\ns_mov_b64 exec, vcc\nglobal_load_dword v247, v2, s[4:5]\ns_mov_b64 exec, -1")
    a(f"v_lshlrev_b32 {vL16}, 4, v0\nv_lshrrev_b32 {vr}, 3, v0\nv_and_b32 {vc}, 7, v0\nv_lshlrev_b32 v6, 17, {vr}\nv_lshl_add_u32 v6, {vc}, 4, v6\nv_mov_b32 v21, 0\nv_mov_b32 v20, {TRG}")
    srd(24, 0x400000); srd(32, 1024); srd(16, 0x20000000 - wsb)
    a(f"s_lshl_b32 {T0}, {SUB}, 20\ns_lshl_b32 {T2}, {H_}, 10\ns_add_u32 {T0}, {T0}, {T2}\ns_lshl_b32 {T2}, {X_}, 7\ns_add_u32 {T0}, {T0}, {T2}")
    a("s_waitcnt lgkmcnt(0)")
    a(f"buffer_load_dwordx4 v[8:11], {vL16}, {sX}, 0 offen\nds_write2_b32 v20, v21, v21 offset0:0 offset1:1\nds_write_b32 v20, v21 offset:8")
    for i in range(16):
        if i: a(f"s_add_u32 {T0}, {T0}, 8192")
        a(f"buffer_load_dwordx4 v[{WB+4*i}:{WB+4*i+3}], v6, {sQ}, {T0} offen nt")
    a("s_waitcnt lgkmcnt(0)\ns_barrier\ns_branch L_svc1")

    vKO, vVO, vQ = "v1", "v2", 4
    vM, vML, vL, vS, vT = "v8", "v9", "v10", "v11", ["v12", "v13", "v14", "v15"]
    vB, vD, vA, vOc, vV0 = 16, 20, 36, 52, 84
    kreg = lambda slot, i: f"a[{16*slot+4*i}:{16*slot+4*i+3}]"
    vreg = lambda slot, i: vV0 + 16 * slot + 4 * i
    a("L_stream:")
    a(f"s_lshl_b32 {HB}, {H_}, 24\ns_lshl_b32 {T0}, {X_}, 9\ns_mul_i32 {T1}, {SUB}, 3\ns_add_u32 {T0}, {T0}, {T1}\ns_add_u32 {T0}, {T0}, s3\ns_sub_u32 {T0}, {T0}, 1\ns_lshl_b32 {T0}, {T0}, 12\ns_add_u32 {CUR}, {HB}, {T0}")
    a(f"v_lshrrev_b32 v12, 4, v0\nv_lshlrev_b32 v12, 6, v12\nv_bfe_u32 v13, v0, 2, 2\nv_and_b32 v14, 3, v0\nv_lshl_add_u32 v12, v13, 8, v12\nv_lshl_add_u32 {vKO}, v14, 4, v12\nv_lshlrev_b32 {vVO}, 4, v0")
    srd(8, 0x8000000); srd(12, 0x8000000)
    TSTEP = 12 * 4096
    S0 = P + E; NS = S0 + 1; NSTAT = NTOT - NS; TB = 24 * NTOT
    assert NSTAT >= 1 and E <= P - 2
    perm = [None] * P
    perm[S0 % P] = 0; perm[(S0 + 1) % P] = 1
    fr = iter(range(2, P))
    perm = [p if p is not None else next(fr) for p in perm]
    slot_of = lambda t: perm[t % P]
    def issue(slot, i, soff):
        if i < 4: a(f"buffer_load_dwordx4 {kreg(slot, i)}, {vKO}, {sK}, {soff} offen offset:{i*1024} nt")
        else:
            r = vreg(slot, i - 4); a(f"buffer_load_dwordx4 v[{r}:{r+3}], {vVO}, {sV}, {soff} offen offset:{(i-4)*1024} nt")
    st = {"m": 0}
    def issue_group():
        m = st["m"]; t, hf = divmod(m, 2)
        if hf == 0 and t > 0: a(f"s_add_u32 {CUR}, {CUR}, {TSTEP}")
        if m >= 2: a("s_waitcnt vmcnt(4)")
        for i in range(4): issue(slot_of(t), 4 * hf + i, CUR)
        if dbg and m >= 2: a(f"s_memrealtime s[98:99]\ns_waitcnt lgkmcnt(0)\nv_writelane_b32 v246, s98, {m}")
        st["m"] = m + 1
    a("s_waitcnt lgkmcnt(0)")
    if dbg: a("s_memrealtime s[94:95]")
    a("s_barrier")
    if dbg: a("s_memrealtime s[92:93]")
    for m in range(2 * P):
        issue_group()
        if m == MQ: a("ds_write_b32 v18, v18 offset:4")
        if m == 1:
            a(f"s_add_u32 s16, s16, {wsb}\ns_addc_u32 s17, s17, 0"); srd(16, 0x20000000 - wsb); srd(32, 1024)
            late_setup()
            a(f"v_mov_b32 {vM}, 0xff7fffff\nv_mov_b32 {vML}, 0xff7fffff\nv_mov_b32 {vL}, 0\nv_mov_b32 {vS}, 0\nv_mov_b32 v18, {TRG}")
            for r in range(32): a(f"v_mov_b32 v{vOc+r}, 0")
            a(f"s_mov_b32 {CNT}, {NSTAT}\ns_mov_b32 {ATT}, 1\ns_add_u32 {DD}, s3, {X_}\ns_lshl_b32 {T0}, {H_}, 10\ns_add_u32 {T0}, {T0}, {TK}\ns_add_u32 s62, s16, {T0}\ns_addc_u32 s63, s17, 0\ns_mov_b32 {QS}, {SUB}")
            if dbg: a(f"v_mov_b32 {VDBG}, 0\nv_mov_b32 v246, 0\ns_waitcnt lgkmcnt(0)\nv_writelane_b32 {VDBG}, s96, 0\nv_writelane_b32 {VDBG}, s94, 5\nv_writelane_b32 {VDBG}, s92, 6")
    stamp(1)
    a("s_branch L_backlog")

    a("L_svc1:")
    a(f"s_add_u32 s16, s16, {wsb}\ns_addc_u32 s17, s17, 0\ns_mov_b32 {T2}, {NON}\nbuffer_load_dwordx2 v[58:59], v21, {sW}, {T2} offen sc1")
    a(f"s_lshl_b32 {T1}, {A_}, 10\ns_add_u32 {T1}, {T1}, {TK}\ns_lshl_b32 {T2}, {X_}, 7\ns_add_u32 {T1}, {T1}, {T2}")
    NST = 1
    if dbg: a(f"v_mov_b32 {VDBG}, 0\nv_mov_b32 v246, 0\nv_writelane_b32 {VDBG}, s96, 0")
    late_setup_pos = len(a.L)
    def allreduce(r, tmp, op="v_add_f32"):
        for n in (8, 4, 2, 1): a(f"{op}_dpp {r}, {r}, {r} row_ror:{n} {FULL}")
        for sw in ("16", "32"): a(f"v_mov_b32 {tmp}, {r}\nv_permlane{sw}_swap_b32 {tmp}, {r}\n{op} {r}, {r}, {tmp}")
    a(f"s_cmp_lg_u32 {X_}, 0\ns_cbranch_scc1 L_noini\ns_mov_b64 exec, 1\nbuffer_store_dword v21, v21, {sW}, {T1} offen sc1\ns_mov_b64 exec, -1\ns_waitcnt vmcnt({16+NST+1})\nL_noini:")
    late_setup()
    a(f"v_bfe_u32 v22, v0, 5, 1\nv_bfe_u32 v23, v0, 4, 1\nv_lshlrev_b32 v22, 2, v22\nv_lshl_add_u32 v22, v23, 1, v22\nv_bfe_u32 v23, v0, 3, 1\nv_add_u32 v22, v22, v23\nv_lshl_add_u32 v22, {vc}, 3, v22\nv_lshlrev_b32 v23, 3, v22")
    a(f"s_lshl_b32 {T0}, {SUB}, 8\nv_lshl_add_u32 v20, {vr}, 5, {T0}")
    a(f"s_cmp_eq_u32 {X_}, 0\ns_cbranch_scc1 L_xw\ns_waitcnt vmcnt({16+NST})\nL_xw:")
    for w in range(4): a(f"v_lshlrev_b32 v{24+2*w}, 16, v{8+w}\nv_and_b32 v{25+2*w}, 0xffff0000, v{8+w}")
    a("v_add_f32 v32, v24, v25\nv_add_f32 v33, v26, v27\nv_add_f32 v34, v28, v29\nv_add_f32 v35, v30, v31\nv_add_f32 v32, v32, v33\nv_add_f32 v34, v34, v35\nv_add_f32 v32, v32, v34")
    allreduce("v32", "v33")
    a(f"v_mul_f32 v32, {fhex(1/512)}, v32")
    for i in range(8): a(f"v_sub_f32 v{40+i}, v{24+i}, v32")
    a("v_mul_f32 v34, v40, v40\nv_mul_f32 v35, v41, v41")
    for i in range(2, 8): a(f"v_fmac_f32 v{34+(i&1)}, v{40+i}, v{40+i}")
    a("v_add_f32 v34, v34, v35")
    allreduce("v34", "v33")
    a(f"v_mul_f32 v34, {fhex(1/512)}, v34")
    bfr("v32"); bfr("v34")
    a(f"v_add_f32 v34, {fhex(1e-5)}, v34"); bfr("v34")
    a("v_sqrt_f32 v34, v34"); bfr("v34"); a("v_rcp_f32 v34, v34")
    for i in range(8): a(f"v_sub_f32 v{40+i}, v{24+i}, v32")
    for w in range(4): a(f"v_cvt_pk_bf16_f32 v{48+w}, v{40+2*w}, v{41+2*w}")
    for w in range(4): a(f"v_lshlrev_b32 v{40+2*w}, 16, v{48+w}\nv_and_b32 v{41+2*w}, 0xffff0000, v{48+w}")
    for i in range(8): a(f"v_mul_f32 v{40+i}, v{40+i}, v34")
    for w in range(4): a(f"v_cvt_pk_bf16_f32 v{48+w}, v{40+2*w}, v{41+2*w}")
    a(f"ds_write_b128 {vL16}, v[48:51] offset:{XN}")
    a(f"s_waitcnt lgkmcnt(0)\nds_read_b128 v[24:27], v20 offset:{XN}\nds_read_b128 v[28:31], v20 offset:{XN+16}\ns_waitcnt lgkmcnt(0)")
    stamp(1)
    def pairdot(r0, r1, xp, acc, first, tmps=("v60", "v61", "v62", "v63")):
        for w in range(4):
            for hh, sel in ((0, SELL), (1, SELH)):
                tm = tmps[(2*w+hh) % len(tmps)]
                a(f"v_perm_b32 {tm}, v{r1+w}, v{r0+w}, {sel}")
                a(f"v_dot2_f32_bf16 v{acc+2*w+hh}, {tm}, {xp}, {'0' if first else 'v%d' % (acc+2*w+hh)}")
    for k in range(8):
        a(f"s_waitcnt vmcnt({16-2*k-2+NST})")
        pairdot(WB + 8*k, WB + 8*k + 4, f"v{24+k}", ACC, k == 0)
    def redscat8(acc, out):
        for e in range(4): a(f"v_permlane32_swap_b32 v{acc+e}, v{acc+e+4}")
        for e in range(4): a(f"v_add_f32 v{acc+e}, v{acc+e}, v{acc+e+4}")
        for e in range(2): a(f"v_permlane16_swap_b32 v{acc+e}, v{acc+e+2}")
        for e in range(2): a(f"v_add_f32 v{acc+e}, v{acc+e}, v{acc+e+2}")
        if out:
            a(f"v_add_f32_dpp {out}, v{acc}, v{acc} row_ror:8 row_mask:0xf bank_mask:0x3\nv_add_f32_dpp {out}, v{acc+1}, v{acc+1} row_ror:8 row_mask:0xf bank_mask:0xc")
    redscat8(ACC, None)
    a(f"s_lshl_b32 {T3}, {H_}, 14\ns_lshl_b32 {T2}, {J_}, 9\ns_add_u32 {T0}, {T3}, {T2}")
    a(f"v_add_f32_dpp v56, v{ACC}, v{ACC} row_ror:8 {FULL}\nv_add_f32_dpp v57, v{ACC+1}, v{ACC+1} row_ror:8 {FULL}")
    a("s_waitcnt vmcnt(0)\nv_add_co_u32 v58, vcc, 1, v58\nv_addc_co_u32 v59, vcc, 0, v59, vcc")
    a(f"s_mov_b32 exec_lo, 0x00ff00ff\ns_mov_b32 exec_hi, 0x00ff00ff\n{'s_nop 0' if noq&1 else f'buffer_store_dwordx4 v[56:59], v23, {sW}, {T0} offen sc1'}\ns_mov_b64 exec, -1")
    stamp(2)
    a(f"ds_write_b64 v21, v[58:59] offset:{NL}")
    def tagcheck(regs, acc):
        for n, r in enumerate(regs):
            a(f"v_xor_b32 {acc}, v{r}, v58" if n == 0 else f"v_bitop3_b32 {acc}, v{r}, v58, {acc} bitop3:0xbe")
            a(f"v_bitop3_b32 {acc}, v{r+1}, v59, {acc} bitop3:0xbe")
    def wait_lds(name, off, sleep, bound):
        a(f"s_mov_b32 {SPN}, {bound}\n{name}:\ns_sleep {sleep}\nds_read_b32 v33, v21 offset:{off}\ns_sub_u32 {SPN}, {SPN}, 1\ns_cbranch_scc1 {name}_d\ns_waitcnt lgkmcnt(0)\nv_cmp_eq_u32 vcc, 0, v33\ns_cbranch_vccnz {name}\n{name}_d:\ns_waitcnt lgkmcnt(0)")
    wait_lds("L_wq", QT, 1, SPIN)
    if noq & 2: a("s_sleep 30\ns_branch L_pollq_done")
    if noq & 4: a(f"s_mov_b32 {SPN}, 0\ns_branch L_pollq")
    a(f"s_mov_b32 {SPN}, {SPIN}\nL_pollq:\ns_mov_b32 {T0}, {T3}")
    for rb in range(4):
        if rb: a(f"s_add_u32 {T0}, {T0}, 4096")
        for k in range(4): a(f"buffer_load_dwordx4 v[{WB+16*rb+4*k}:{WB+16*rb+4*k+3}], {vL16}, {sW}, {T0} offen offset:{1024*k} sc1")
    a(f"s_sub_u32 {SPN}, {SPN}, 1\ns_cbranch_scc1 L_pollq_done\ns_waitcnt vmcnt(0)")
    tagcheck([WB + 4 * k + 2 for k in range(16)], "v33")
    a("v_cmp_ne_u32 vcc, 0, v33\ns_cbranch_vccnz L_pollq\nL_pollq_done:\ns_waitcnt vmcnt(0)")
    stamp(4)
    for k in range(4):
        for e in range(2):
            r = WB + 4 * k + e
            a(f"v_add_f32 v{r}, v{r}, v{r+16}\nv_add_f32 v{r+32}, v{r+32}, v{r+48}\nv_add_f32 v{r}, v{r}, v{r+32}")
    a("v_lshrrev_b32 v34, 2, v0\nv_and_b32 v35, 3, v0\nv_lshlrev_b32 v34, 6, v34\nv_lshl_add_u32 v34, v35, 2, v34")
    for w in range(4): a(f"v_cvt_pk_bf16_f32 v{48+w}, v{WB+4*w}, v{WB+4*w+1}")
    for w in range(4): a(f"ds_write_b32 v34, v{48+w} offset:{QL+16*w}")
    a(f"s_waitcnt lgkmcnt(0)\ns_barrier\ns_setprio 0\ns_branch L_svc2")

    a(f"L_backlog:\ns_barrier\nds_read_b128 v[{vQ}:{vQ+3}], {vVO} offset:{QL}\ns_waitcnt lgkmcnt(0)")
    stamp(2)
    uid = [0]
    def softmax(last):
        t = vT[0]; uid[0] += 1
        a(f"v_cvt_pk_bf16_f32 {t}, {vS}, {vS}\nv_lshlrev_b32 {t}, 16, {t}\nv_mul_f32 {t}, {SCALE}, {t}\nv_cvt_pk_bf16_f32 {t}, {t}, {t}\nv_lshlrev_b32 {t}, 16, {t}")
        a(f"v_cmp_gt_f32 vcc, {t}, {vM}\ns_cbranch_vccz L_nr{uid[0]}\ns_call_b64 {RET}, L_rescale\nL_nr{uid[0]}:")
        a(f"v_fma_f32 {t}, {t}, {LOG2E}, -{vML}\nv_exp_f32 {t}, {t}\nv_add_f32 {vL}, {vL}, {t}")
        a(f"v_mov_b32_dpp {vT[1]}, {t} row_ror:12 {FULL}\nv_cvt_pk_bf16_f32 v{vB}, {t}, {vT[1]}\nv_mov_b32_dpp v{vB+1}, v{vB} row_ror:8 {FULL}")
        if last:
            a(f"v_add_f32_dpp v19, {vL}, {vL} row_ror:4 {FULL}\nv_add_f32_dpp v19, v19, v19 row_ror:8 {FULL}")
            for sw in ("16", "32"):
                a(f"v_mov_b32 {vT[2]}, v19\nv_permlane{sw}_swap_b32 {vT[2]}, v19\nv_add_f32 v19, v19, {vT[2]}")
    def kpart(sl, last=False):
        for sg in range(4): a(f"v_mfma_f32_16x16x32_bf16 v[{vD+4*sg}:{vD+4*sg+3}], {kreg(sl, sg)}, v[{vQ}:{vQ+3}], 0")
        for k in range(3):
            for sg in range(4):
                d = vD + 4 * sg; u = [u for u in range(4) if u != sg][k]
                a(f"v_add_f32_dpp {vS if k == 2 else vT[sg]}, v{d+u}, {f'v{d+sg}' if k == 0 else vT[sg]} row_ror:{(4*(sg-u))%16} row_mask:0xf bank_mask:{hex(1<<sg)}")
        softmax(last)
    def pv(slot, h):
        r0, r1 = vreg(slot, 2 * h), vreg(slot, 2 * h + 1)
        perms = []
        for w in range(4):
            perms.append(f"v_perm_b32 v{vA+2*(2*w)+h}, v{r1+w}, v{r0+w}, {SELL}")
            perms.append(f"v_perm_b32 v{vA+2*(2*w+1)+h}, v{r1+w}, v{r0+w}, {SELH}")
        if h == 0:
            for p in perms: a(p)
        else:
            mf = [f"v_mfma_f32_16x16x16_bf16 v[{vOc+4*e}:{vOc+4*e+3}], v[{vA+2*e}:{vA+2*e+1}], v[{vB}:{vB+1}], v[{vOc+4*e}:{vOc+4*e+3}]" for e in range(8)]
            for k in range(8):
                a(perms[k])
                if k >= 2: a(mf[k-2])
            a(mf[6]); a(mf[7])
    final_m = 2 * S0 + 2
    def wait_for(n):
        w = 4 * (st["m"] - n - 1)
        if w < 63: a(f"s_waitcnt vmcnt({w})")
    for t in range(S0):
        sl = slot_of(t)
        wait_for(2 * t); kpart(sl)
        wait_for(2 * t + 1); pv(sl, 0); pv(sl, 1)
        for _ in range(99 if t == S0 - 1 else 1):
            if st["m"] >= final_m or st["m"] - 2 * P > 2 * t + 1: break
            issue_group()
    assert st["m"] == final_m
    stamp(3)
    if dbg: a("s_mov_b32 s93, 16\ns_mov_b32 s94, s98")
    vW = vreg(2, 0)
    vN0, vN1, vA1, vA2, vA3, vA4, vA5, vA6, vXo, vX, vZ, vLW, vLM, vL8, vU0, vU1, vWo, vG1, vH1 = (f"v{r}" for r in range(138, 157))
    def wo_issue():
        for i in range(8):
            if i: a(f"s_add_u32 s89, s89, 16384")
            a(f"buffer_load_dwordx2 v[{vW+2*i}:{vW+2*i+1}], {vWo}, {sO}, s89 offen nt")
    def tail_prep():
        a(f"s_lshl_b32 {T0}, {H_}, 2\ns_lshr_b32 {T1}, {JR}, 3\ns_add_u32 {T0}, {T0}, {T1}\ns_lshl_b32 {T2}, {T0}, 3\ns_and_b32 {T1}, {JR}, 4\ns_add_u32 {T1}, {T1}, s3\ns_add_u32 {T2}, {T2}, {T1}")
        a(f"s_lshl_b32 {T0}, {T0}, 7\ns_add_u32 {T0}, {T0}, {T1}\ns_lshl_b32 {T0}, {T0}, 10\ns_and_b32 {T1}, {JR}, 3\ns_lshl_b32 {T3}, {T1}, 8\ns_add_u32 s89, {T0}, {T3}")
        a(f"v_lshrrev_b32 {vU0}, 5, v0\nv_and_b32 {vU1}, 31, v0\nv_lshlrev_b32 {vWo}, 13, {vU0}\nv_lshl_add_u32 {vWo}, {vU1}, 3, {vWo}")
        a(f"s_lshr_b32 s78, {T2}, 1\ns_lshl_b32 s78, s78, 12\ns_and_b32 {T0}, {T2}, 1\ns_lshl_b32 {T0}, {T0}, 6\ns_add_u32 s78, s78, {T0}\ns_add_u32 s78, s78, {H1}")
        a(f"s_lshl_b32 s80, {T1}, 16\ns_lshl_b32 {T0}, {H_}, 3\ns_add_u32 {T0}, {T0}, {X_}\ns_lshl_b32 {T0}, {T0}, 6\ns_add_u32 s80, s80, {T0}\ns_add_u32 s80, s80, {H2}")
        a(f"s_and_b32 {T0}, {FIN}, 63\ns_lshl_b32 s88, {T0}, 4\ns_lshl_b32 {T0}, {T0}, 12\ns_add_u32 s81, {T0}, {H2}\ns_add_u32 s87, {T0}, {GA}")
        a(f"s_lshl_b32 s76, {H_}, 16\ns_lshl_b32 {T0}, s3, 14\ns_add_u32 s76, s76, {T0}\ns_lshl_b32 {T0}, {J_}, 7\ns_add_u32 s76, s76, {T0}\ns_add_u32 s76, s76, {H1}")
        a("s_mov_b32 s82, 0xaaaaaaaa\ns_mov_b32 s83, 0xaaaaaaaa")
        a(f"v_mov_b32 {vZ}, 0\nds_read_b64 v[138:139], {vZ} offset:{NL}")
        a(f"s_lshl_b32 {T0}, s3, 9\nv_lshl_add_u32 {vA5}, {vU1}, 1, {vU0}\nv_lshl_add_u32 {vA5}, {vA5}, 3, {T0}\nv_lshlrev_b32 {vG1}, 4, {vU1}\nv_lshl_add_u32 {vG1}, {vU0}, 10, {vG1}")
        a(f"s_mul_i32 {T0}, s3, 528\nv_lshl_add_u32 {vA1}, {vU1}, 4, {T0}")
        a(f"v_and_b32 {vU1}, 3, v0\nv_lshl_add_u32 {vXo}, {vU1}, 1, {vU0}\nv_lshlrev_b32 {vXo}, 1, {vXo}")
        a(f"v_lshrrev_b32 {vU0}, 2, v0\nv_lshlrev_b32 {vA6}, 12, {vU0}\nv_lshl_add_u32 {vA6}, {vU1}, 4, {vA6}\nv_lshlrev_b32 {vH1}, 7, {vU0}\nv_lshl_add_u32 {vH1}, {vU1}, 4, {vH1}")
        a(f"s_sub_u32 {T0}, s3, 1\ns_mul_i32 {T1}, {T0}, {OBS}\ns_lshl_b32 {T0}, {T0}, 5\ns_add_u32 {T0}, {T0}, {MLB}")
        a(f"v_lshl_add_u32 {vLM}, {vU1}, 3, {T0}\nv_mul_u32_u24 {vLW}, 528, {vU1}\nv_lshrrev_b32 {vU0}, 4, v0\nv_lshl_add_u32 {vLW}, {vU0}, 4, {vLW}\nv_add_u32 {vLW}, {T1}, {vLW}")
        a(f"v_lshlrev_b32 {vL8}, 3, v0\ns_lshl_b32 {T0}, s3, 3\nv_mov_b32 {vA2}, {T0}\nv_lshlrev_b32 {vA4}, 4, v0")
        a(f"v_lshrrev_b32 {vA3}, 3, v0\nv_and_b32 {vU0}, 7, v0\nv_lshlrev_b32 {vA3}, 12, {vA3}\nv_lshl_add_u32 {vA3}, {vU0}, 4, {vA3}")
    def request():
        a(f"s_add_u32 {DD}, {DD}, 1\ns_and_b32 {QS}, {DD}, 3\ns_cmp_eq_u32 {ATT}, 0\ns_cselect_b32 {QS}, {SUB}, {QS}\ns_lshl_b32 {T0}, {QS}, 13\ns_mov_b32 {TKT}, 1\ns_atomic_add {TKT}, {CTR}, {T0} glc")
    for rho in (0, 1):
        a(f"L_loop{rho}:\ns_waitcnt vmcnt(4)")
        if dbg: a(f"s_waitcnt lgkmcnt(0)\ns_mov_b32 m0, s93\ns_add_u32 s93, s93, 1\nv_writelane_b32 {VDBG}, s94, m0\ns_memrealtime s[94:95]")
        a(f"s_cmp_eq_u32 {CNT}, 0\ns_cbranch_scc1 L_dyn{rho}\ns_add_u32 {CUR}, {CUR}, {TSTEP}\nL_go{rho}:")
        for i in range(4): issue(1 - rho, i, CUR)
        a(f"s_cmp_gt_u32 {CNT}, 1\ns_cbranch_scc1 L_nrq{rho}")
        request()
        a(f"s_mov_b32 {CNT}, 1\nL_nrq{rho}:\ns_sub_u32 {CNT}, {CNT}, 1")
        kpart(rho)
        a("s_waitcnt vmcnt(4)")
        for i in range(4, 8): issue(1 - rho, i, CUR)
        if not ckearly: pv(rho, 0); pv(rho, 1)
        a(f"s_cmp_lg_u32 {CNT}, 0\ns_cbranch_scc1 L_nck{rho}\ns_cmp_eq_u32 {QS}, {SUB}\ns_cbranch_scc1 L_nck{rho}\ns_waitcnt lgkmcnt(0)\ns_cmp_lt_u32 {TKT}, {1024-TB}\ns_cbranch_scc1 L_nck{rho}\ns_mov_b32 {ATT}, 0")
        request()
        a(f"L_nck{rho}:")
        if ckearly: pv(rho, 0); pv(rho, 1)
    a("s_branch L_loop0")
    for rho in (0, 1):
        a(f"L_dyn{rho}:\ns_waitcnt lgkmcnt(0)\ns_add_u32 {T0}, {TKT}, {TB}\ns_cmp_ge_u32 {T0}, {1024-THR}\ns_cbranch_scc1 L_trg{rho}\nL_adr{rho}:")
        if THH: a(f"s_cmp_ge_u32 {T0}, {1024-THH}\ns_cselect_b32 {ATT}, 0, {ATT}")
        a(f"s_and_b32 {T1}, {T0}, 1\ns_lshr_b32 {T0}, {T0}, 1\ns_lshl_b32 {T1}, {T1}, 9\ns_add_u32 {T0}, {T0}, {T1}\ns_lshl_b32 {T0}, {T0}, 12\ns_lshl_b32 {T1}, {QS}, 22\ns_add_u32 {T0}, {T0}, {T1}\ns_add_u32 {CUR}, {HB}, {T0}\ns_branch L_go{rho}")
        a(f"L_trg{rho}:\nds_write_b32 v18, v18")
        if THR2: a(f"s_cmp_lt_u32 {T0}, {1024-THR2}\ns_cbranch_scc1 L_tr2{rho}\nds_write_b32 v18, v18 offset:8\nL_tr2{rho}:")
        a(f"s_waitcnt lgkmcnt(0)\ns_cmp_lt_u32 {T0}, 1024\ns_cbranch_scc1 L_adr{rho}")
        stamp(4)
        tail_prep()
        kpart(rho, last=True)
        a("s_mov_b32 exec_lo, 0x000f000f\ns_mov_b32 exec_hi, 0x000f000f")
        a(f"ds_write2_b32 {vLM}, {vML}, v19 offset0:0 offset1:1\ns_mov_b64 exec, -1")
        a("s_waitcnt vmcnt(2)"); pv(rho, 0)
        a("s_waitcnt vmcnt(0)"); pv(rho, 1)
        if rho == 0: a("s_branch L_fin")
    a("L_fin:\ns_mov_b32 exec_lo, 0x000f000f\ns_mov_b32 exec_hi, 0x000f000f")
    for e in range(8): a(f"ds_write_b128 {vLW}, v[{vOc+4*e}:{vOc+4*e+3}] offset:{OB+64*e}")
    a("s_mov_b64 exec, -1")
    wo_issue()
    a("s_branch L_tail")
    a("L_rescale:")
    t = vT[0]; u_, w_ = vT[1], vT[2]
    a(f"v_max_f32 {u_}, {t}, {vM}\nv_max_f32_dpp {u_}, {u_}, {u_} row_ror:4 {FULL}\nv_max_f32_dpp {u_}, {u_}, {u_} row_ror:8 {FULL}")
    for sw in ("16", "32"):
        a(f"v_mov_b32 {w_}, {u_}\nv_permlane{sw}_swap_b32 {w_}, {u_}\nv_max_f32 {u_}, {u_}, {w_}")
    a(f"v_mov_b32 {vM}, {u_}\nv_mul_f32 {u_}, {LOG2E}, {u_}\nv_sub_f32 {w_}, {vML}, {u_}\nv_exp_f32 {w_}, {w_}\nv_mov_b32 {vML}, {u_}\nv_mul_f32 {vL}, {vL}, {w_}")
    for r in range(0, 32, 2): a(f"v_pk_mul_f32 v[{vOc+r}:{vOc+r+1}], v[{vOc+r}:{vOc+r+1}], v[14:15] op_sel_hi:[1,0]")
    a(f"s_setpc_b64 {RET}")

    a("L_svc2:")
    stamp(5)
    tail_prep()
    a(f"v_mul_u32_u24 v6, {8*3584}, {vr}\nv_lshl_add_u32 v6, {vc}, 4, v6\ns_mul_i32 s28, {X_}, {64*3584}\ns_lshl_b32 {T1}, {A_}, 7\ns_add_u32 s28, s28, {T1}")
    a(f"s_lshl_b32 {T1}, {X_}, 7\nv_lshl_add_u32 v7, {vr}, 4, {T1}\nds_read_b128 v[24:27], v7 offset:{XN}\nv_lshlrev_b32 v23, 4, v22\nv_lshlrev_b32 v7, 2, v0")
    a(f"s_lshl_b32 s29, {A_}, 13\ns_add_u32 s29, s29, {GP1}\ns_lshl_b32 {T1}, {X_}, 10\ns_add_u32 s30, s29, {T1}")
    a(f"s_lshr_b32 {T1}, {X_}, 2\ns_lshl_b32 {T2}, {T1}, 9\ns_add_u32 s29, s29, {T2}\ns_lshl_b32 {T2}, {A_}, 1\ns_add_u32 {T2}, {T2}, {T1}")
    a(f"s_and_b32 {T1}, {X_}, 3\ns_lshl_b32 s31, {T2}, 15\ns_lshl_b32 {T3}, {T1}, 8\ns_add_u32 s31, s31, {T3}\ns_lshl_b32 s61, {T1}, 16\ns_lshl_b32 {T2}, {T2}, 6\ns_add_u32 s61, s61, {T2}\ns_add_u32 s61, s61, {GA}")
    W2R, W2P = 160, 192
    a(f"s_cmp_ge_u32 {A_}, 28\ns_cbranch_scc1 L_noglu1")
    def g1_issue(k):
        b = WB + 16 * k
        if k: a(f"s_add_u32 s28, s28, 7168")
        a(f"buffer_load_dwordx4 v[{b}:{b+3}], v6, {s1}, s28 offen nt\nbuffer_load_dwordx4 v[{b+4}:{b+7}], v6, {s1}, s28 offen offset:3584 nt")
        a(f"buffer_load_dwordx4 v[{b+8}:{b+11}], v6, {s3_}, s28 offen nt\nbuffer_load_dwordx4 v[{b+12}:{b+15}], v6, {s3_}, s28 offen offset:3584 nt")
    for k in range(gth): g1_issue(k)
    for k in range(4):
        b = WB + 16 * k
        a(f"s_waitcnt vmcnt({4*(min(k+gth,4)-k-1)}) lgkmcnt(0)")
        if k + gth < 4: g1_issue(k + gth)
        pairdot(b, b + 4, f"v{24+k}", ACC, k == 0); pairdot(b + 8, b + 12, f"v{24+k}", ACC + 8, k == 0)
    redscat8(ACC, "v56"); redscat8(ACC + 8, "v57")
    a("L_noglu1:")
    stamp(6)
    wait_lds("L_wtrg", TRG, tsleep, SPIN * 8)
    stamp(7)
    a(f"s_cmp_ge_u32 {A_}, 28\ns_cbranch_scc1 L_noglu2")
    a(f"buffer_store_dwordx4 v[56:59], v23, {sW}, s30 offen sc1\ns_add_u32 s30, s29, 4096\ns_mov_b32 {SPN}, {SPIN}")
    def w2_loads():
        for i in range(32):
            if i and i % 4 == 0: a(f"s_add_u32 s31, s31, 4096")
            a(f"buffer_load_dword v{W2R+i}, v7, {s2_}, s31 offen offset:{1024*(i%4)} nt")
    def w2_perm():
        for k in range(16): a(f"v_perm_b32 v{W2P+2*k}, v{W2R+2*k+1}, v{W2R+2*k}, {SELL}\nv_perm_b32 v{W2P+2*k+1}, v{W2R+2*k+1}, v{W2R+2*k}, {SELH}")
    def w2_dot():
        for k in range(16):
            for c in range(2): a(f"v_dot2c_f32_bf16_dpp v{96+2*(k&1)+c}, v{88+(k>>3)}, v{W2P+2*k+c} row_newbcast:{2*(k&7)} {FULL}")
        a(f"v_add_f32 v100, v96, v98\nv_add_f32 v101, v97, v99")
    if not w2late: w2_loads()
    if THR2:
        wait_lds("L_wtr2", TR2, 1, SPIN * 8)
        a(f"s_mov_b32 {SPN}, {SPIN}")
    a(f"v_mov_b32 v96, 0\nv_mov_b32 v97, 0\nv_mov_b32 v98, 0\nv_mov_b32 v99, 0\nv_mov_b32 v102, {vN0}\nv_mov_b32 v103, {vN1}\nL_pollh:")
    for i in range(4): a(f"buffer_load_dwordx4 v[{72+4*i}:{75+4*i}], {vG1}, {sW}, {('s29','s30')[i>>1]} offen offset:{2048*(i&1)} sc1")
    a(f"s_sub_u32 {SPN}, {SPN}, 1\ns_cbranch_scc1 L_pollh_done\ns_waitcnt vmcnt(0)")
    tagcheck([74, 78, 82, 86], "v88")
    a("v_cmp_ne_u32 vcc, 0, v88\ns_cbranch_vccnz L_pollh\nL_pollh_done:\ns_waitcnt vmcnt(0)")
    if not w2late: w2_perm()
    a("v_add_f32 v88, v72, v76\nv_add_f32 v89, v73, v77\nv_add_f32 v90, v80, v84\nv_add_f32 v91, v81, v85")
    a("v_add_f32 v88, v88, v90\nv_add_f32 v89, v89, v91\nv_permlane32_swap_b32 v88, v89\nv_add_f32 v89, v88, v89\nv_mov_b32 v88, v89\nv_permlane32_swap_b32 v88, v89")
    bfr("v88"); bfr("v89"); silu_bf("v88", "v90")
    a(f"v_mul_f32 v88, v88, v89\nv_mov_b32_dpp v89, v88 quad_perm:[1,1,3,3] {FULL}\nv_cvt_pk_bf16_f32 v89, v88, v89\nv_mov_b32 v88, v89\nv_permlane16_swap_b32 v88, v89")
    if not w2late: w2_dot()
    a("L_noglu2:")
    if not w2late: wo_issue()
    stamp(3)
    a("L_tail:")
    a(f"s_waitcnt lgkmcnt(0)\nv_mov_b32 v39, {vN0}\ns_barrier")
    stamp(8)
    for s_ in range(3): a(f"ds_read_b64 v[{20+2*s_}:{21+2*s_}], {vA2} offset:{MLB+32*s_}")
    for s_ in range(3): a(f"ds_read_b128 v[{72+4*s_}:{75+4*s_}], {vA1} offset:{OB+OBS*s_}")
    a("s_waitcnt lgkmcnt(3)\nv_max3_f32 v32, v20, v22, v24")
    for s_ in range(3): a(f"v_sub_f32 v{20+2*s_}, v{20+2*s_}, v32")
    for s_ in range(3): a(f"v_exp_f32 v{20+2*s_}, v{20+2*s_}")
    a("v_mul_f32 v33, v21, v20\nv_fmac_f32 v33, v23, v22\nv_fmac_f32 v33, v25, v24\ns_mov_b32 exec_hi, 0")
    a("s_waitcnt lgkmcnt(1)")
    for i in range(4): a(f"v_mul_f32 v{72+i}, v{72+i}, v20")
    for i in range(4): a(f"v_fmac_f32 v{72+i}, v{76+i}, v22")
    a("v_cndmask_b32 v38, v32, v33, s[82:83]\ns_waitcnt lgkmcnt(0)")
    for i in range(4): a(f"v_fmac_f32 v{72+i}, v{80+i}, v24")
    a("v_cvt_pk_bf16_f32 v36, v72, v73\nv_cvt_pk_bf16_f32 v37, v74, v75")
    a(f"buffer_store_dwordx4 v[36:39], {vA3}, {sW}, s76 offen sc1\ns_mov_b64 exec, -1")
    stamp(9)
    def h1_load(i): a(f"buffer_load_dwordx4 v[{20+4*i}:{23+4*i}], {vH1}, {sW}, s78 offen offset:{2048*i} sc1")
    PW = 52
    def wo_perm():
        for i in range(8): a(f"v_permlane32_swap_b32 v{vW+2*i}, v{vW+2*i+1}")
        for i in range(8): a(f"v_perm_b32 v{PW+2*i}, v{vW+2*i+1}, v{vW+2*i}, {SELL}\nv_perm_b32 v{PW+2*i+1}, v{vW+2*i+1}, v{vW+2*i}, {SELH}")
    a(f"s_mov_b32 {SPN}, {SPIN}\nv_mov_b32 v44, 0\nv_mov_b32 v45, 0\nv_mov_b32 v46, 0\nv_mov_b32 v47, 0\nv_mov_b32 v70, {vN0}\nv_mov_b32 v71, {vN1}")
    if w2late:
        a(f"s_cmp_lg_u32 s3, 0\ns_cbranch_scc1 L_wop")
        wo_issue()
        a(f"s_cmp_ge_u32 {A_}, 28\ns_cbranch_scc1 L_wop0")
        w2_loads()
        a("s_waitcnt vmcnt(32)"); wo_perm()
        for i in range(2): h1_load(i)
        a("s_waitcnt vmcnt(2)"); w2_perm(); w2_dot()
        a(f"buffer_store_dwordx4 v[100:103], {vA6}, {sW}, s61 offen sc1\ns_waitcnt vmcnt(1)\ns_branch L_poll1c")
        a("L_wop0:\ns_waitcnt vmcnt(0)\nL_wop:")
    a("s_waitcnt vmcnt(1)")
    wo_perm()
    for i in range(2): h1_load(i)
    if not w2late:
        a(f"s_cmp_lg_u32 s3, 0\ns_cbranch_scc1 L_poll1\ns_cmp_ge_u32 {A_}, 28\ns_cbranch_scc1 L_poll1")
        a(f"buffer_store_dwordx4 v[100:103], {vA6}, {sW}, s61 offen sc1\ns_waitcnt vmcnt(1)\ns_branch L_poll1c")
    def repoll(name, loadf, n):
        if n == 4: a(f"s_or_b64 s[66:67], {CM[0]}, {CM[1]}\ns_or_b64 s[68:69], {CM[2]}, {CM[3]}\ns_or_b64 s[66:67], s[66:67], s[68:69]\ns_cbranch_scc0 {name}_done")
        else: a(f"s_or_b64 s[66:67], {CM[0]}, {CM[1]}\ns_cbranch_scc0 {name}_done")
        a(f"s_sub_u32 {SPN}, {SPN}, 1\ns_cbranch_scc1 {name}_done")
        for i in range(n):
            a(f"s_cmp_eq_u64 {CM[i]}, 0\ns_cbranch_scc1 {name}_s{i}")
            loadf(i)
            a(f"{name}_s{i}:")
        a(f"s_branch {name}\n{name}_done:")
    a("L_poll1:\ns_waitcnt vmcnt(0)\nL_poll1c:")
    for i in range(2): a(f"v_cmp_ne_u32 {CM[i]}, v{23+4*i}, {vN0}")
    for i in range(2): a(f"v_mov_b32_dpp v{36+i}, v{22+4*i} quad_perm:[0,0,2,2] {FULL}")
    a("v_lshlrev_b32 v28, 16, v20\nv_max_f32 v41, v36, v37\nv_and_b32 v29, 0xffff0000, v20\nv_lshlrev_b32 v30, 16, v21")
    repoll("L_poll1", h1_load, 2)
    stamp(10)
    def g_load(i):
        if i == 3: a("s_mov_b32 exec_hi, 0")
        a(f"buffer_load_dwordx4 v[{72+4*i}:{75+4*i}], {vA4}, {sW}, s87 offen offset:{1024*i} sc1")
        if i == 3: a("s_mov_b64 exec, -1")
    def g_first():
        a(f"v_mov_b32 v84, 0\nv_mov_b32 v85, 0\nv_mov_b32 v86, {vN0}\nv_mov_b32 v87, {vN1}\nbuffer_load_ushort {vX}, {vXo}, {sX}, s88 offen")
        for i in range(4): g_load(i)
    if gearly:
        a(f"s_cmp_lg_u32 s3, 1\ns_cbranch_scc1 L_nge\ns_cmp_eq_u32 {FIN}, -1\ns_cbranch_scc1 L_nge")
        g_first()
        a("L_nge:")
    a(f"v_max_f32_dpp v41, v41, v41 row_ror:4 {FULL}\nv_and_b32 v31, 0xffff0000, v21\nv_lshlrev_b32 v32, 16, v24\nv_max_f32_dpp v41, v41, v41 row_ror:8 {FULL}")
    a("v_mov_b32 v42, v41\nv_and_b32 v33, 0xffff0000, v24\nv_lshlrev_b32 v34, 16, v25\nv_permlane16_swap_b32 v42, v41\nv_max_f32 v41, v41, v42")
    a("v_mov_b32 v42, v41\nv_and_b32 v35, 0xffff0000, v25\ns_nop 0\nv_permlane32_swap_b32 v42, v41\nv_max_f32 v41, v41, v42")
    a("v_sub_f32 v36, v36, v41\nv_sub_f32 v37, v37, v41\nv_exp_f32 v36, v36\nv_exp_f32 v37, v37")
    for r in (28, 29, 30, 31, 22): a(f"v_mul_f32 v{r}, v{r}, v36")
    for r in (28, 29, 30, 31, 22): a(f"v_fmac_f32 v{r}, v{r+4}, v37")
    a("v_permlane32_swap_b32 v28, v29\nv_mov_b32 v26, v22\nv_permlane32_swap_b32 v30, v31\nv_add_f32 v28, v28, v29\nv_permlane32_swap_b32 v26, v22\nv_add_f32 v30, v30, v31\nv_add_f32 v22, v22, v26")
    a("v_mov_b32 v26, v22\nv_permlane16_swap_b32 v28, v30\nv_add_f32 v28, v28, v30\nv_permlane16_swap_b32 v26, v22\nv_add_f32 v22, v22, v26")
    for n in (4, 8): a(f"v_add_f32_dpp v28, v28, v28 row_ror:{n} {FULL}\nv_add_f32_dpp v22, v22, v22 row_ror:{n} {FULL}")
    a(f"v_rcp_f32_dpp v22, v22 quad_perm:[1,1,3,3] {FULL}\nv_mul_f32 v28, v28, v22\nv_mov_b32 v29, v28\nv_permlane32_swap_b32 v29, v28\nv_cvt_pk_bf16_f32 v28, v29, v28\nv_mov_b32 v29, v28\nv_permlane16_swap_b32 v29, v28")
    for k in range(8):
        for c in range(2): a(f"v_dot2c_f32_bf16_dpp v{44+2*(k&1)+c}, v{29-(k&1)}, v{PW+2*k+c} row_newbcast:{k>>1} {FULL}")
    a(f"v_add_f32 v44, v44, v46\nv_add_f32 v45, v45, v47\nds_write_b64 {vA5}, v[44:45] offset:{SX}\ns_waitcnt lgkmcnt(0)\ns_barrier")
    a("s_cmp_lg_u32 s3, 0\ns_cbranch_scc1 L_notpub")
    for w in range(4): a(f"ds_read_b64 v[{20+2*w}:{21+2*w}], {vL8} offset:{SX+512*w}")
    a("s_waitcnt lgkmcnt(2)\nv_add_f32 v20, v20, v22\nv_add_f32 v21, v21, v23\ns_waitcnt lgkmcnt(0)\nv_add_f32 v24, v24, v26\nv_add_f32 v25, v25, v27\nv_add_f32 v68, v20, v24\nv_add_f32 v69, v21, v25")
    a(f"buffer_store_dwordx4 v[68:71], {vA6}, {sW}, s80 offen sc1")
    stamp(11)
    a("s_branch L_done\nL_notpub:")
    a(f"s_cmp_lg_u32 s3, 1\ns_cbranch_scc1 L_done\ns_cmp_eq_u32 {FIN}, -1\ns_cbranch_scc1 L_done")
    def red2(c, tmp):
        a(f"v_permlane32_swap_b32 v{c}, v{c+1}\nv_add_f32 v{c}, v{c}, v{c+1}\nv_mov_b32 {tmp}, v{c}\nv_permlane16_swap_b32 {tmp}, v{c}\nv_add_f32 v{c}, v{c}, {tmp}")
        a(f"v_add_f32_dpp v{c}, v{c}, v{c} row_ror:4 {FULL}\nv_add_f32_dpp v{c}, v{c}, v{c} row_ror:8 {FULL}")
    def h2_load(i): a(f"buffer_load_dwordx4 v[{20+4*i}:{23+4*i}], {vA4}, {sW}, s81 offen offset:{1024*i} sc1")
    a(f"s_mov_b32 {SPN}, {SPIN}")
    if not gearly: g_first()
    if h2o == 0:
        for i in range(4): h2_load(i)
        a("s_waitcnt vmcnt(4)\ns_branch L_pollgc")
    a("L_pollg:\ns_waitcnt vmcnt(0)\nL_pollgc:")
    for i in range(4): a(f"v_cmp_ne_u64 {CM[i]}, v[{74+4*i}:{75+4*i}], v[138:139]")
    a("v_add_f32 v42, v72, v76\nv_add_f32 v43, v73, v77\nv_add_f32 v40, v80, v84\nv_add_f32 v41, v81, v85")
    repoll("L_pollg", g_load, 4)
    def nonce_store():
        a(f"s_cmp_lg_u32 {FIN}, 0\ns_cbranch_scc1 L_nonon\ns_mov_b32 {T0}, {NON}\ns_mov_b64 exec, 1\nbuffer_store_dwordx2 v[138:139], {vZ}, {sW}, {T0} offen sc1\ns_mov_b64 exec, -1\nL_nonon:")
    if nearly: nonce_store()
    a("v_add_f32 v42, v42, v40\nv_add_f32 v43, v43, v41")
    if h2o == 1:
        for i in range(4): h2_load(i)
    red2(42, "v41")
    bfr("v42"); silu_bf("v42", "v43"); a(f"v_lshlrev_b32 {vX}, 16, {vX}")
    if h2s: a(f"s_sleep {h2s}")
    if h2o == 2:
        for i in range(4): h2_load(i)
    stamp(15)
    a(f"s_mov_b32 {SPN}, {SPIN}\nL_poll2:\ns_waitcnt vmcnt(0)")
    for i in range(4): a(f"v_cmp_ne_u64 {CM[i]}, v[{22+4*i}:{23+4*i}], v[138:139]")
    a("v_add_f32 v38, v20, v24\nv_add_f32 v39, v21, v25\nv_add_f32 v36, v28, v32\nv_add_f32 v37, v29, v33")
    repoll("L_poll2", h2_load, 4)
    stamp(12)
    a("v_add_f32 v20, v38, v36\nv_add_f32 v21, v39, v37")
    red2(20, "v22")
    bfr("v20"); a("v_mul_f32 v20, v20, v42"); bfr("v20"); a(f"v_add_f32 v20, v20, {vX}\nv_cvt_pk_bf16_f32 v20, v20, v20")
    a(f"s_mov_b32 exec_lo, 15\ns_mov_b32 exec_hi, 15\nbuffer_store_short v20, {vXo}, {sY}, s88 offen {outsc}\ns_mov_b64 exec, -1")
    if not nearly: nonce_store()
    a("L_done:")
    if dbg:
        stamp(13)
        a("s_getreg_b32 s98, hwreg(HW_REG_XCC_ID)")
        a(f"v_writelane_b32 {VDBG}, s98, 14")
        a(f"s_lshl_b32 {T0}, s2, 2\ns_add_u32 {T0}, {T0}, s3\ns_lshl_b32 {T0}, {T0}, 8\ns_add_u32 {T0}, {T0}, {DBG}\ns_sub_u32 s16, s16, {wsb}\ns_subb_u32 s17, s17, 0\nv_lshlrev_b32 v12, 2, v0\nbuffer_store_dword {VDBG}, v12, {sW}, {T0} offen\ns_add_u32 {T0}, {T0}, 0x40000\nbuffer_store_dword v246, v12, {sW}, {T0} offen")
    a("L_end:\ns_endpgm")
    a.pad()
    a('.section .rodata,"a"\n.p2align 6')
    a(f".amdhsa_kernel {KN}_kernel")
    a("""  .amdhsa_next_free_vgpr 512
  .amdhsa_next_free_sgpr 102
  .amdhsa_accum_offset 256
  .amdhsa_group_segment_fixed_size 0
  .amdhsa_kernarg_size 96
  .amdhsa_user_sgpr_count 2
  .amdhsa_user_sgpr_kernarg_segment_ptr 1
  .amdhsa_system_sgpr_workgroup_id_x 1
  .amdhsa_float_denorm_mode_32 3
.end_amdhsa_kernel""")
    return a.text()
if __name__ == "__main__":
    kw = eval("dict(%s)" % (sys.argv[2] if len(sys.argv) > 2 else ""))
    open(sys.argv[1], "w").write(gen(**kw))
```

```python
import sys
from asmlib import *
KN = "recurrent_scan__gqa_block_cached__glu_gated_swiglu__decode"
QP, TK, NON, GP1, GA, H1, H2, DBG = 0x0, 0x20000, 0x28000, 0x30000, 0x70000, 0xC0000, 0x140000, 0x400000
XN, QL, NL, TRG, QT, TR2, MLB, OB = 0, 1024, 2048, 2056, 2060, 2064, 2080, 2176
SX = 0
OBS = 2112
LDS_BYTES = OB + 3 * OBS
SPIN = 1 << 20
FULL = "row_mask:0xf bank_mask:0xf"

def gen(P=7, E=4, NTOT=37, THR=26, MQ=7, dbg=False, wsb=0x1f000000, tsleep=4, gearly=False, al=0, h2o=2, h2s=0, h1s=1, THH=36, ckearly=True, nearly=True, outsc='sc1', gth=4, noq=0, THR2=0, w2late=False, touch=0):
    a = Asm()
    hdr = open("cdna_kernels/" + KN + ".s.ref").read().split("; Override launch")[0]
    a.L += hdr.rstrip().split("\n")
    a(f"; @launch grid=(256,1,1) block=(256,1,1) lds={LDS_BYTES}")
    a('.amdgcn_target "amdgcn-amd-amdhsa--gfx950"\n.text')
    if al: a(f".p2align {al}")
    a(f".globl {KN}_kernel\n.p2align 8\n.type {KN}_kernel,@function\n{KN}_kernel:")
    sK, sV, sW, sO = "s[8:11]", "s[12:15]", "s[16:19]", "s[20:23]"
    sQ, sX, sY, s1, s3_, s2_ = "s[24:27]", "s[32:35]", "s[36:39]", "s[40:43]", "s[44:47]", "s[48:51]"
    X_, A_, H_, SUB, J_, FIN = "s52", "s53", "s54", "s55", "s56", "s59"
    CUR, CNT, ATT, DD, HB, QS, TKT = "s30", "s60", "s61", "s31", "s28", "s29", "s86"
    CTR, RET = "s[62:63]", "s[64:65]"
    T0, T1, T2, T3 = "s66", "s67", "s68", "s69"
    SELL, SELH, SCALE, LOG2E, SPN, JR = "s70", "s71", "s72", "s73", "s74", "s77"
    CM = ["s[90:91]", "s[92:93]", "s[94:95]", "s[84:85]"]
    VDBG = "v3"
    def stamp(k):
        if dbg: a(f"s_memrealtime s[98:99]\ns_waitcnt lgkmcnt(0)\nv_writelane_b32 {VDBG}, s98, {k}")
    def srd(base, n): a(f"s_mov_b32 s{base+2}, {hex(n)}\ns_mov_b32 s{base+3}, 0x20000")
    def bfr(r): a(f"v_cvt_pk_bf16_f32 {r}, {r}, {r}\nv_lshlrev_b32 {r}, 16, {r}")
    def silu_bf(r, tmp):
        a(f"v_mul_f32 {tmp}, {LOG2E}, {r}\nv_exp_f32 {tmp}, -{tmp}\nv_add_f32 {tmp}, 1.0, {tmp}\nv_rcp_f32 {tmp}, {tmp}\nv_mul_f32 {r}, {r}, {tmp}"); bfr(r)
    a(f"s_lshr_b32 {A_}, s2, 3\ns_cmp_ge_u32 {A_}, 32\ns_cbranch_scc1 L_end")
    for base, off in ((8, 8), (12, 16), (24, 24), (32, 0), (16, 88)): a(f"s_load_dwordx2 s[{base}:{base+1}], s[0:1], {off}")
    a("v_readfirstlane_b32 s3, v0\nv_and_b32 v0, 63, v0")
    if dbg: a("s_memrealtime s[96:97]")
    a(f"s_and_b32 {X_}, s2, 7\ns_and_b32 {H_}, {A_}, 7\ns_lshr_b32 {SUB}, {A_}, 3\ns_lshr_b32 s3, s3, 6\ns_cbranch_scc1 L_stream")
    def late_setup():
        for base, off in ((20, 32), (36, 72), (40, 48), (44, 56), (48, 64)): a(f"s_load_dwordx2 s[{base}:{base+1}], s[0:1], {off}")
        for base, n in ((20, 0x400000), (36, 1024), (40, 512*3584), (44, 512*3584), (48, 1792*1024)): srd(base, n)
        a(f"s_mov_b32 {SELL}, 0x05040100\ns_mov_b32 {SELH}, 0x07060302\ns_mov_b32 {SCALE}, {fhex(128**-0.5)}\ns_mov_b32 {LOG2E}, {fhex(1.4426950408889634)}")
        a(f"s_lshl_b32 {J_}, {SUB}, 3\ns_add_u32 {J_}, {J_}, {X_}\ns_lshl_b32 {JR}, {X_}, 2\ns_add_u32 {JR}, {JR}, {SUB}")
        a(f"s_sub_u32 {T0}, {X_}, {A_}\ns_and_b32 {T0}, {T0}, 7\ns_lshl_b32 {T1}, {A_}, 1\ns_add_u32 {T2}, {T1}, 1")
        a(f"s_cmp_eq_u32 {T0}, 4\ns_cselect_b32 {FIN}, {T1}, -1\ns_cmp_eq_u32 {T0}, 2\ns_cselect_b32 {FIN}, {T2}, {FIN}")
    vL16, vr, vc, WB, ACC = "v2", "v4", "v5", 64, 40
    a(f"s_getpc_b64 s[4:5]\nL_pc:\ns_lshl_b32 s6, {A_}, 7\nv_lshl_add_u32 v2, v0, 12, s6\nv_cmp_gt_u32 vcc, L_end-L_pc, v2\ns_setprio 3\ns_mov_b64 exec, vcc\nglobal_load_dword v247, v2, s[4:5]\ns_mov_b64 exec, -1")
    a(f"v_lshlrev_b32 {vL16}, 4, v0\nv_lshrrev_b32 {vr}, 3, v0\nv_and_b32 {vc}, 7, v0\nv_lshlrev_b32 v6, 17, {vr}\nv_lshl_add_u32 v6, {vc}, 4, v6\nv_mov_b32 v21, 0\nv_mov_b32 v20, {TRG}")
    srd(24, 0x400000); srd(32, 1024); srd(16, 0x20000000 - wsb)
    a(f"s_lshl_b32 {T0}, {SUB}, 20\ns_lshl_b32 {T2}, {H_}, 10\ns_add_u32 {T0}, {T0}, {T2}\ns_lshl_b32 {T2}, {X_}, 7\ns_add_u32 {T0}, {T0}, {T2}")
    a("s_waitcnt lgkmcnt(0)")
    a(f"buffer_load_dwordx4 v[8:11], {vL16}, {sX}, 0 offen\nds_write2_b32 v20, v21, v21 offset0:0 offset1:1\nds_write_b32 v20, v21 offset:8")
    for i in range(16):
        if i: a(f"s_add_u32 {T0}, {T0}, 8192")
        a(f"buffer_load_dwordx4 v[{WB+4*i}:{WB+4*i+3}], v6, {sQ}, {T0} offen nt")
    a("s_waitcnt lgkmcnt(0)\ns_barrier\ns_branch L_svc1")

    vKO, vVO, vQ = "v1", "v2", 4
    vM, vML, vL, vS, vT = "v8", "v9", "v10", "v11", ["v12", "v13", "v14", "v15"]
    vB, vD, vA, vOc, vV0 = 16, 20, 36, 52, 84
    kreg = lambda slot, i: f"a[{16*slot+4*i}:{16*slot+4*i+3}]"
    vreg = lambda slot, i: vV0 + 16 * slot + 4 * i
    a("L_stream:")
    a(f"s_lshl_b32 {HB}, {H_}, 24\ns_lshl_b32 {T0}, {X_}, 9\ns_mul_i32 {T1}, {SUB}, 3\ns_add_u32 {T0}, {T0}, {T1}\ns_add_u32 {T0}, {T0}, s3\ns_sub_u32 {T0}, {T0}, 1\ns_lshl_b32 {T0}, {T0}, 12\ns_add_u32 {CUR}, {HB}, {T0}")
    a(f"v_lshrrev_b32 v12, 4, v0\nv_lshlrev_b32 v12, 6, v12\nv_bfe_u32 v13, v0, 2, 2\nv_and_b32 v14, 3, v0\nv_lshl_add_u32 v12, v13, 8, v12\nv_lshl_add_u32 {vKO}, v14, 4, v12\nv_lshlrev_b32 {vVO}, 4, v0")
    srd(8, 0x8000000); srd(12, 0x8000000)
    TSTEP = 12 * 4096
    S0 = P + E; NS = S0 + 1; NSTAT = NTOT - NS; TB = 24 * NTOT
    assert NSTAT >= 1 and E <= P - 2
    perm = [None] * P
    perm[S0 % P] = 0; perm[(S0 + 1) % P] = 1
    fr = iter(range(2, P))
    perm = [p if p is not None else next(fr) for p in perm]
    slot_of = lambda t: perm[t % P]
    def issue(slot, i, soff):
        if i < 4: a(f"buffer_load_dwordx4 {kreg(slot, i)}, {vKO}, {sK}, {soff} offen offset:{i*1024} nt")
        else:
            r = vreg(slot, i - 4); a(f"buffer_load_dwordx4 v[{r}:{r+3}], {vVO}, {sV}, {soff} offen offset:{(i-4)*1024} nt")
    st = {"m": 0}
    def issue_group():
        m = st["m"]; t, hf = divmod(m, 2)
        if hf == 0 and t > 0: a(f"s_add_u32 {CUR}, {CUR}, {TSTEP}")
        if m >= 2: a("s_waitcnt vmcnt(4)")
        for i in range(4): issue(slot_of(t), 4 * hf + i, CUR)
        if dbg and m >= 2: a(f"s_memrealtime s[98:99]\ns_waitcnt lgkmcnt(0)\nv_writelane_b32 v246, s98, {m}")
        st["m"] = m + 1
    a("s_waitcnt lgkmcnt(0)")
    if dbg: a("s_memrealtime s[94:95]")
    a("s_barrier")
    if dbg: a("s_memrealtime s[92:93]")
    for m in range(2 * P):
        issue_group()
        if m == MQ: a("ds_write_b32 v18, v18 offset:4")
        if m == 1:
            a(f"s_add_u32 s16, s16, {wsb}\ns_addc_u32 s17, s17, 0"); srd(16, 0x20000000 - wsb); srd(32, 1024)
            late_setup()
            a(f"v_mov_b32 {vM}, 0xff7fffff\nv_mov_b32 {vML}, 0xff7fffff\nv_mov_b32 {vL}, 0\nv_mov_b32 {vS}, 0\nv_mov_b32 v18, {TRG}")
            for r in range(32): a(f"v_mov_b32 v{vOc+r}, 0")
            a(f"s_mov_b32 {CNT}, {NSTAT}\ns_mov_b32 {ATT}, 1\ns_add_u32 {DD}, s3, {X_}\ns_lshl_b32 {T0}, {H_}, 10\ns_add_u32 {T0}, {T0}, {TK}\ns_add_u32 s62, s16, {T0}\ns_addc_u32 s63, s17, 0\ns_mov_b32 {QS}, {SUB}")
            if dbg: a(f"v_mov_b32 {VDBG}, 0\nv_mov_b32 v246, 0\ns_waitcnt lgkmcnt(0)\nv_writelane_b32 {VDBG}, s96, 0\nv_writelane_b32 {VDBG}, s94, 5\nv_writelane_b32 {VDBG}, s92, 6")
    stamp(1)
    a("s_branch L_backlog")

    a("L_svc1:")
    a(f"s_add_u32 s16, s16, {wsb}\ns_addc_u32 s17, s17, 0\ns_mov_b32 {T2}, {NON}\nbuffer_load_dwordx2 v[58:59], v21, {sW}, {T2} offen sc1")
    a(f"s_lshl_b32 {T1}, {A_}, 10\ns_add_u32 {T1}, {T1}, {TK}\ns_lshl_b32 {T2}, {X_}, 7\ns_add_u32 {T1}, {T1}, {T2}")
    NST = 1
    if dbg: a(f"v_mov_b32 {VDBG}, 0\nv_mov_b32 v246, 0\nv_writelane_b32 {VDBG}, s96, 0")
    late_setup_pos = len(a.L)
    def allreduce(r, tmp, op="v_add_f32"):
        for n in (8, 4, 2, 1): a(f"{op}_dpp {r}, {r}, {r} row_ror:{n} {FULL}")
        for sw in ("16", "32"): a(f"v_mov_b32 {tmp}, {r}\nv_permlane{sw}_swap_b32 {tmp}, {r}\n{op} {r}, {r}, {tmp}")
    a(f"s_cmp_lg_u32 {X_}, 0\ns_cbranch_scc1 L_noini\ns_mov_b64 exec, 1\nbuffer_store_dword v21, v21, {sW}, {T1} offen sc1\ns_mov_b64 exec, -1\ns_waitcnt vmcnt({16+NST+1})\nL_noini:")
    late_setup()
    a(f"v_bfe_u32 v22, v0, 5, 1\nv_bfe_u32 v23, v0, 4, 1\nv_lshlrev_b32 v22, 2, v22\nv_lshl_add_u32 v22, v23, 1, v22\nv_bfe_u32 v23, v0, 3, 1\nv_add_u32 v22, v22, v23\nv_lshl_add_u32 v22, {vc}, 3, v22\nv_lshlrev_b32 v23, 3, v22")
    a(f"s_lshl_b32 {T0}, {SUB}, 8\nv_lshl_add_u32 v20, {vr}, 5, {T0}")
    a(f"s_cmp_eq_u32 {X_}, 0\ns_cbranch_scc1 L_xw\ns_waitcnt vmcnt({16+NST})\nL_xw:")
    for w in range(4): a(f"v_lshlrev_b32 v{24+2*w}, 16, v{8+w}\nv_and_b32 v{25+2*w}, 0xffff0000, v{8+w}")
    a("v_add_f32 v32, v24, v25\nv_add_f32 v33, v26, v27\nv_add_f32 v34, v28, v29\nv_add_f32 v35, v30, v31\nv_add_f32 v32, v32, v33\nv_add_f32 v34, v34, v35\nv_add_f32 v32, v32, v34")
    allreduce("v32", "v33")
    a(f"v_mul_f32 v32, {fhex(1/512)}, v32")
    for i in range(8): a(f"v_sub_f32 v{40+i}, v{24+i}, v32")
    a("v_mul_f32 v34, v40, v40\nv_mul_f32 v35, v41, v41")
    for i in range(2, 8): a(f"v_fmac_f32 v{34+(i&1)}, v{40+i}, v{40+i}")
    a("v_add_f32 v34, v34, v35")
    allreduce("v34", "v33")
    a(f"v_mul_f32 v34, {fhex(1/512)}, v34")
    bfr("v32"); bfr("v34")
    a(f"v_add_f32 v34, {fhex(1e-5)}, v34"); bfr("v34")
    a("v_sqrt_f32 v34, v34"); bfr("v34"); a("v_rcp_f32 v34, v34")
    for i in range(8): a(f"v_sub_f32 v{40+i}, v{24+i}, v32")
    for w in range(4): a(f"v_cvt_pk_bf16_f32 v{48+w}, v{40+2*w}, v{41+2*w}")
    for w in range(4): a(f"v_lshlrev_b32 v{40+2*w}, 16, v{48+w}\nv_and_b32 v{41+2*w}, 0xffff0000, v{48+w}")
    for i in range(8): a(f"v_mul_f32 v{40+i}, v{40+i}, v34")
    for w in range(4): a(f"v_cvt_pk_bf16_f32 v{48+w}, v{40+2*w}, v{41+2*w}")
    a(f"ds_write_b128 {vL16}, v[48:51] offset:{XN}")
    a(f"s_waitcnt lgkmcnt(0)\nds_read_b128 v[24:27], v20 offset:{XN}\nds_read_b128 v[28:31], v20 offset:{XN+16}\ns_waitcnt lgkmcnt(0)")
    stamp(1)
    def pairdot(r0, r1, xp, acc, first, tmps=("v60", "v61", "v62", "v63")):
        for w in range(4):
            for hh, sel in ((0, SELL), (1, SELH)):
                tm = tmps[(2*w+hh) % len(tmps)]
                a(f"v_perm_b32 {tm}, v{r1+w}, v{r0+w}, {sel}")
                a(f"v_dot2_f32_bf16 v{acc+2*w+hh}, {tm}, {xp}, {'0' if first else 'v%d' % (acc+2*w+hh)}")
    for k in range(8):
        a(f"s_waitcnt vmcnt({16-2*k-2+NST})")
        pairdot(WB + 8*k, WB + 8*k + 4, f"v{24+k}", ACC, k == 0)
    def redscat8(acc, out):
        for e in range(4): a(f"v_permlane32_swap_b32 v{acc+e}, v{acc+e+4}")
        for e in range(4): a(f"v_add_f32 v{acc+e}, v{acc+e}, v{acc+e+4}")
        for e in range(2): a(f"v_permlane16_swap_b32 v{acc+e}, v{acc+e+2}")
        for e in range(2): a(f"v_add_f32 v{acc+e}, v{acc+e}, v{acc+e+2}")
        if out:
            a(f"v_add_f32_dpp {out}, v{acc}, v{acc} row_ror:8 row_mask:0xf bank_mask:0x3\nv_add_f32_dpp {out}, v{acc+1}, v{acc+1} row_ror:8 row_mask:0xf bank_mask:0xc")
    redscat8(ACC, None)
    a(f"s_lshl_b32 {T3}, {H_}, 14\ns_lshl_b32 {T2}, {J_}, 9\ns_add_u32 {T0}, {T3}, {T2}")
    a(f"v_add_f32_dpp v56, v{ACC}, v{ACC} row_ror:8 {FULL}\nv_add_f32_dpp v57, v{ACC+1}, v{ACC+1} row_ror:8 {FULL}")
    a("s_waitcnt vmcnt(0)\nv_add_co_u32 v58, vcc, 1, v58\nv_addc_co_u32 v59, vcc, 0, v59, vcc")
    a(f"s_mov_b32 exec_lo, 0x00ff00ff\ns_mov_b32 exec_hi, 0x00ff00ff\n{'s_nop 0' if noq&1 else f'buffer_store_dwordx4 v[56:59], v23, {sW}, {T0} offen sc1'}\ns_mov_b64 exec, -1")
    stamp(2)
    a(f"ds_write_b64 v21, v[58:59] offset:{NL}")
    if touch:
        a(f"s_waitcnt lgkmcnt(0)\ns_mov_b64 exec, 1\ns_lshl_b32 {T0}, {H_}, 19\nbuffer_load_dword v248, v21, {sO}, {T0} offen\nbuffer_load_dword v249, v21, {sY}, 0 offen\nbuffer_load_dword v250, v21, {s2_}, 0 offen")
        a(f"s_mov_b32 {T0}, {H1}\nbuffer_load_dword v251, v21, {sW}, {T0} offen\ns_mov_b32 {T0}, {H2}\nbuffer_load_dword v252, v21, {sW}, {T0} offen\ns_mov_b64 exec, -1")
    def tagcheck(regs, acc):
        for n, r in enumerate(regs):
            a(f"v_xor_b32 {acc}, v{r}, v58" if n == 0 else f"v_bitop3_b32 {acc}, v{r}, v58, {acc} bitop3:0xbe")
            a(f"v_bitop3_b32 {acc}, v{r+1}, v59, {acc} bitop3:0xbe")
    def wait_lds(name, off, sleep, bound):
        a(f"s_mov_b32 {SPN}, {bound}\n{name}:\ns_sleep {sleep}\nds_read_b32 v33, v21 offset:{off}\ns_sub_u32 {SPN}, {SPN}, 1\ns_cbranch_scc1 {name}_d\ns_waitcnt lgkmcnt(0)\nv_cmp_eq_u32 vcc, 0, v33\ns_cbranch_vccnz {name}\n{name}_d:\ns_waitcnt lgkmcnt(0)")
    wait_lds("L_wq", QT, 1, SPIN)
    if noq & 2: a("s_sleep 30\ns_branch L_pollq_done")
    if noq & 4: a(f"s_mov_b32 {SPN}, 0\ns_branch L_pollq")
    a(f"s_mov_b32 {SPN}, {SPIN}\nL_pollq:\ns_mov_b32 {T0}, {T3}")
    for rb in range(4):
        if rb: a(f"s_add_u32 {T0}, {T0}, 4096")
        for k in range(4): a(f"buffer_load_dwordx4 v[{WB+16*rb+4*k}:{WB+16*rb+4*k+3}], {vL16}, {sW}, {T0} offen offset:{1024*k} sc1")
    a(f"s_sub_u32 {SPN}, {SPN}, 1\ns_cbranch_scc1 L_pollq_done\ns_waitcnt vmcnt(0)")
    tagcheck([WB + 4 * k + 2 for k in range(16)], "v33")
    a("v_cmp_ne_u32 vcc, 0, v33\ns_cbranch_vccnz L_pollq\nL_pollq_done:\ns_waitcnt vmcnt(0)")
    stamp(4)
    for k in range(4):
        for e in range(2):
            r = WB + 4 * k + e
            a(f"v_add_f32 v{r}, v{r}, v{r+16}\nv_add_f32 v{r+32}, v{r+32}, v{r+48}\nv_add_f32 v{r}, v{r}, v{r+32}")
    a("v_lshrrev_b32 v34, 2, v0\nv_and_b32 v35, 3, v0\nv_lshlrev_b32 v34, 6, v34\nv_lshl_add_u32 v34, v35, 2, v34")
    for w in range(4): a(f"v_cvt_pk_bf16_f32 v{48+w}, v{WB+4*w}, v{WB+4*w+1}")
    for w in range(4): a(f"ds_write_b32 v34, v{48+w} offset:{QL+16*w}")
    a(f"s_waitcnt lgkmcnt(0)\ns_barrier\ns_setprio 0\ns_branch L_svc2")

    a(f"L_backlog:\ns_barrier\nds_read_b128 v[{vQ}:{vQ+3}], {vVO} offset:{QL}\ns_waitcnt lgkmcnt(0)")
    stamp(2)
    uid = [0]
    def softmax(last):
        t = vT[0]; uid[0] += 1
        a(f"v_cvt_pk_bf16_f32 {t}, {vS}, {vS}\nv_lshlrev_b32 {t}, 16, {t}\nv_mul_f32 {t}, {SCALE}, {t}\nv_cvt_pk_bf16_f32 {t}, {t}, {t}\nv_lshlrev_b32 {t}, 16, {t}")
        a(f"v_cmp_gt_f32 vcc, {t}, {vM}\ns_cbranch_vccz L_nr{uid[0]}\ns_call_b64 {RET}, L_rescale\nL_nr{uid[0]}:")
        a(f"v_fma_f32 {t}, {t}, {LOG2E}, -{vML}\nv_exp_f32 {t}, {t}\nv_add_f32 {vL}, {vL}, {t}")
        a(f"v_mov_b32_dpp {vT[1]}, {t} row_ror:12 {FULL}\nv_cvt_pk_bf16_f32 v{vB}, {t}, {vT[1]}\nv_mov_b32_dpp v{vB+1}, v{vB} row_ror:8 {FULL}")
        if last:
            a(f"v_add_f32_dpp v19, {vL}, {vL} row_ror:4 {FULL}\nv_add_f32_dpp v19, v19, v19 row_ror:8 {FULL}")
            for sw in ("16", "32"):
                a(f"v_mov_b32 {vT[2]}, v19\nv_permlane{sw}_swap_b32 {vT[2]}, v19\nv_add_f32 v19, v19, {vT[2]}")
    def kpart(sl, last=False):
        for sg in range(4): a(f"v_mfma_f32_16x16x32_bf16 v[{vD+4*sg}:{vD+4*sg+3}], {kreg(sl, sg)}, v[{vQ}:{vQ+3}], 0")
        for k in range(3):
            for sg in range(4):
                d = vD + 4 * sg; u = [u for u in range(4) if u != sg][k]
                a(f"v_add_f32_dpp {vS if k == 2 else vT[sg]}, v{d+u}, {f'v{d+sg}' if k == 0 else vT[sg]} row_ror:{(4*(sg-u))%16} row_mask:0xf bank_mask:{hex(1<<sg)}")
        softmax(last)
    def pv(slot, h):
        r0, r1 = vreg(slot, 2 * h), vreg(slot, 2 * h + 1)
        perms = []
        for w in range(4):
            perms.append(f"v_perm_b32 v{vA+2*(2*w)+h}, v{r1+w}, v{r0+w}, {SELL}")
            perms.append(f"v_perm_b32 v{vA+2*(2*w+1)+h}, v{r1+w}, v{r0+w}, {SELH}")
        if h == 0:
            for p in perms: a(p)
        else:
            mf = [f"v_mfma_f32_16x16x16_bf16 v[{vOc+4*e}:{vOc+4*e+3}], v[{vA+2*e}:{vA+2*e+1}], v[{vB}:{vB+1}], v[{vOc+4*e}:{vOc+4*e+3}]" for e in range(8)]
            for k in range(8):
                a(perms[k])
                if k >= 2: a(mf[k-2])
            a(mf[6]); a(mf[7])
    final_m = 2 * S0 + 2
    def wait_for(n):
        w = 4 * (st["m"] - n - 1)
        if w < 63: a(f"s_waitcnt vmcnt({w})")
    for t in range(S0):
        sl = slot_of(t)
        wait_for(2 * t); kpart(sl)
        wait_for(2 * t + 1); pv(sl, 0); pv(sl, 1)
        for _ in range(99 if t == S0 - 1 else 1):
            if st["m"] >= final_m or st["m"] - 2 * P > 2 * t + 1: break
            issue_group()
    assert st["m"] == final_m
    stamp(3)
    if dbg: a("s_mov_b32 s93, 16\ns_mov_b32 s94, s98")
    vW = vreg(2, 0)
    vN0, vN1, vA1, vA2, vA3, vA4, vA5, vA6, vXo, vX, vZ, vLW, vLM, vL8, vU0, vU1, vWo, vG1, vH1 = (f"v{r}" for r in range(138, 157))
    def wo_issue():
        for i in range(8):
            if i: a(f"s_add_u32 s89, s89, 16384")
            a(f"buffer_load_dwordx2 v[{vW+2*i}:{vW+2*i+1}], {vWo}, {sO}, s89 offen nt")
    def tail_prep():
        a(f"s_lshl_b32 {T0}, {H_}, 2\ns_lshr_b32 {T1}, {JR}, 3\ns_add_u32 {T0}, {T0}, {T1}\ns_lshl_b32 {T2}, {T0}, 3\ns_and_b32 {T1}, {JR}, 4\ns_add_u32 {T1}, {T1}, s3\ns_add_u32 {T2}, {T2}, {T1}")
        a(f"s_lshl_b32 {T0}, {T0}, 7\ns_add_u32 {T0}, {T0}, {T1}\ns_lshl_b32 {T0}, {T0}, 10\ns_and_b32 {T1}, {JR}, 3\ns_lshl_b32 {T3}, {T1}, 8\ns_add_u32 s89, {T0}, {T3}")
        a(f"v_lshrrev_b32 {vU0}, 5, v0\nv_and_b32 {vU1}, 31, v0\nv_lshlrev_b32 {vWo}, 13, {vU0}\nv_lshl_add_u32 {vWo}, {vU1}, 3, {vWo}")
        a(f"s_lshr_b32 s78, {T2}, 1\ns_lshl_b32 s78, s78, 12\ns_and_b32 {T0}, {T2}, 1\ns_lshl_b32 {T0}, {T0}, 6\ns_add_u32 s78, s78, {T0}\ns_add_u32 s78, s78, {H1}")
        a(f"s_lshl_b32 s80, {T1}, 16\ns_lshl_b32 {T0}, {H_}, 3\ns_add_u32 {T0}, {T0}, {X_}\ns_lshl_b32 {T0}, {T0}, 6\ns_add_u32 s80, s80, {T0}\ns_add_u32 s80, s80, {H2}")
        a(f"s_and_b32 {T0}, {FIN}, 63\ns_lshl_b32 s88, {T0}, 4\ns_lshl_b32 {T0}, {T0}, 12\ns_add_u32 s81, {T0}, {H2}\ns_add_u32 s87, {T0}, {GA}")
        a(f"s_lshl_b32 s76, {H_}, 16\ns_lshl_b32 {T0}, s3, 14\ns_add_u32 s76, s76, {T0}\ns_lshl_b32 {T0}, {J_}, 7\ns_add_u32 s76, s76, {T0}\ns_add_u32 s76, s76, {H1}")
        a("s_mov_b32 s82, 0xaaaaaaaa\ns_mov_b32 s83, 0xaaaaaaaa")
        a(f"v_mov_b32 {vZ}, 0\nds_read_b64 v[138:139], {vZ} offset:{NL}")
        a(f"s_lshl_b32 {T0}, s3, 9\nv_lshl_add_u32 {vA5}, {vU1}, 1, {vU0}\nv_lshl_add_u32 {vA5}, {vA5}, 3, {T0}\nv_lshlrev_b32 {vG1}, 4, {vU1}\nv_lshl_add_u32 {vG1}, {vU0}, 10, {vG1}")
        a(f"s_mul_i32 {T0}, s3, 528\nv_lshl_add_u32 {vA1}, {vU1}, 4, {T0}")
        a(f"v_and_b32 {vU1}, 3, v0\nv_lshl_add_u32 {vXo}, {vU1}, 1, {vU0}\nv_lshlrev_b32 {vXo}, 1, {vXo}")
        a(f"v_lshrrev_b32 {vU0}, 2, v0\nv_lshlrev_b32 {vA6}, 12, {vU0}\nv_lshl_add_u32 {vA6}, {vU1}, 4, {vA6}\nv_lshlrev_b32 {vH1}, 7, {vU0}\nv_lshl_add_u32 {vH1}, {vU1}, 4, {vH1}")
        a(f"s_sub_u32 {T0}, s3, 1\ns_mul_i32 {T1}, {T0}, {OBS}\ns_lshl_b32 {T0}, {T0}, 5\ns_add_u32 {T0}, {T0}, {MLB}")
        a(f"v_lshl_add_u32 {vLM}, {vU1}, 3, {T0}\nv_mul_u32_u24 {vLW}, 528, {vU1}\nv_lshrrev_b32 {vU0}, 4, v0\nv_lshl_add_u32 {vLW}, {vU0}, 4, {vLW}\nv_add_u32 {vLW}, {T1}, {vLW}")
        a(f"v_lshlrev_b32 {vL8}, 3, v0\ns_lshl_b32 {T0}, s3, 3\nv_mov_b32 {vA2}, {T0}\nv_lshlrev_b32 {vA4}, 4, v0")
        a(f"v_lshrrev_b32 {vA3}, 3, v0\nv_and_b32 {vU0}, 7, v0\nv_lshlrev_b32 {vA3}, 12, {vA3}\nv_lshl_add_u32 {vA3}, {vU0}, 4, {vA3}")
    def request():
        a(f"s_add_u32 {DD}, {DD}, 1\ns_and_b32 {QS}, {DD}, 3\ns_cmp_eq_u32 {ATT}, 0\ns_cselect_b32 {QS}, {SUB}, {QS}\ns_lshl_b32 {T0}, {QS}, 13\ns_mov_b32 {TKT}, 1\ns_atomic_add {TKT}, {CTR}, {T0} glc")
    for rho in (0, 1):
        a(f"L_loop{rho}:\ns_waitcnt vmcnt(4)")
        if dbg: a(f"s_waitcnt lgkmcnt(0)\ns_mov_b32 m0, s93\ns_add_u32 s93, s93, 1\nv_writelane_b32 {VDBG}, s94, m0\ns_memrealtime s[94:95]")
        a(f"s_cmp_eq_u32 {CNT}, 0\ns_cbranch_scc1 L_dyn{rho}\ns_add_u32 {CUR}, {CUR}, {TSTEP}\nL_go{rho}:")
        for i in range(4): issue(1 - rho, i, CUR)
        a(f"s_cmp_gt_u32 {CNT}, 1\ns_cbranch_scc1 L_nrq{rho}")
        request()
        a(f"s_mov_b32 {CNT}, 1\nL_nrq{rho}:\ns_sub_u32 {CNT}, {CNT}, 1")
        kpart(rho)
        a("s_waitcnt vmcnt(4)")
        for i in range(4, 8): issue(1 - rho, i, CUR)
        if not ckearly: pv(rho, 0); pv(rho, 1)
        a(f"s_cmp_lg_u32 {CNT}, 0\ns_cbranch_scc1 L_nck{rho}\ns_cmp_eq_u32 {QS}, {SUB}\ns_cbranch_scc1 L_nck{rho}\ns_waitcnt lgkmcnt(0)\ns_cmp_lt_u32 {TKT}, {1024-TB}\ns_cbranch_scc1 L_nck{rho}\ns_mov_b32 {ATT}, 0")
        request()
        a(f"L_nck{rho}:")
        if ckearly: pv(rho, 0); pv(rho, 1)
    a("s_branch L_loop0")
    for rho in (0, 1):
        a(f"L_dyn{rho}:\ns_waitcnt lgkmcnt(0)\ns_add_u32 {T0}, {TKT}, {TB}\ns_cmp_ge_u32 {T0}, {1024-THR}\ns_cbranch_scc1 L_trg{rho}\nL_adr{rho}:")
        if THH: a(f"s_cmp_ge_u32 {T0}, {1024-THH}\ns_cselect_b32 {ATT}, 0, {ATT}")
        a(f"s_and_b32 {T1}, {T0}, 1\ns_lshr_b32 {T0}, {T0}, 1\ns_lshl_b32 {T1}, {T1}, 9\ns_add_u32 {T0}, {T0}, {T1}\ns_lshl_b32 {T0}, {T0}, 12\ns_lshl_b32 {T1}, {QS}, 22\ns_add_u32 {T0}, {T0}, {T1}\ns_add_u32 {CUR}, {HB}, {T0}\ns_branch L_go{rho}")
        a(f"L_trg{rho}:\nds_write_b32 v18, v18")
        if THR2: a(f"s_cmp_lt_u32 {T0}, {1024-THR2}\ns_cbranch_scc1 L_tr2{rho}\nds_write_b32 v18, v18 offset:8\nL_tr2{rho}:")
        a(f"s_waitcnt lgkmcnt(0)\ns_cmp_lt_u32 {T0}, 1024\ns_cbranch_scc1 L_adr{rho}")
        stamp(4)
        tail_prep()
        kpart(rho, last=True)
        a("s_mov_b32 exec_lo, 0x000f000f\ns_mov_b32 exec_hi, 0x000f000f")
        a(f"ds_write2_b32 {vLM}, {vML}, v19 offset0:0 offset1:1\ns_mov_b64 exec, -1")
        a("s_waitcnt vmcnt(2)"); pv(rho, 0)
        a("s_waitcnt vmcnt(0)"); pv(rho, 1)
        if rho == 0: a("s_branch L_fin")
    a("L_fin:\ns_mov_b32 exec_lo, 0x000f000f\ns_mov_b32 exec_hi, 0x000f000f")
    for e in range(8): a(f"ds_write_b128 {vLW}, v[{vOc+4*e}:{vOc+4*e+3}] offset:{OB+64*e}")
    a("s_mov_b64 exec, -1")
    wo_issue()
    a("s_branch L_tail")
    a("L_rescale:")
    t = vT[0]; u_, w_ = vT[1], vT[2]
    a(f"v_max_f32 {u_}, {t}, {vM}\nv_max_f32_dpp {u_}, {u_}, {u_} row_ror:4 {FULL}\nv_max_f32_dpp {u_}, {u_}, {u_} row_ror:8 {FULL}")
    for sw in ("16", "32"):
        a(f"v_mov_b32 {w_}, {u_}\nv_permlane{sw}_swap_b32 {w_}, {u_}\nv_max_f32 {u_}, {u_}, {w_}")
    a(f"v_mov_b32 {vM}, {u_}\nv_mul_f32 {u_}, {LOG2E}, {u_}\nv_sub_f32 {w_}, {vML}, {u_}\nv_exp_f32 {w_}, {w_}\nv_mov_b32 {vML}, {u_}\nv_mul_f32 {vL}, {vL}, {w_}")
    for r in range(0, 32, 2): a(f"v_pk_mul_f32 v[{vOc+r}:{vOc+r+1}], v[{vOc+r}:{vOc+r+1}], v[14:15] op_sel_hi:[1,0]")
    a(f"s_setpc_b64 {RET}")

    a("L_svc2:")
    stamp(5)
    tail_prep()
    a(f"v_mul_u32_u24 v6, {8*3584}, {vr}\nv_lshl_add_u32 v6, {vc}, 4, v6\ns_mul_i32 s28, {X_}, {64*3584}\ns_lshl_b32 {T1}, {A_}, 7\ns_add_u32 s28, s28, {T1}")
    a(f"s_lshl_b32 {T1}, {X_}, 7\nv_lshl_add_u32 v7, {vr}, 4, {T1}\nds_read_b128 v[24:27], v7 offset:{XN}\nv_lshlrev_b32 v23, 4, v22\nv_lshlrev_b32 v7, 2, v0")
    a(f"s_lshl_b32 s29, {A_}, 13\ns_add_u32 s29, s29, {GP1}\ns_lshl_b32 {T1}, {X_}, 10\ns_add_u32 s30, s29, {T1}")
    a(f"s_lshr_b32 {T1}, {X_}, 2\ns_lshl_b32 {T2}, {T1}, 9\ns_add_u32 s29, s29, {T2}\ns_lshl_b32 {T2}, {A_}, 1\ns_add_u32 {T2}, {T2}, {T1}")
    a(f"s_and_b32 {T1}, {X_}, 3\ns_lshl_b32 s31, {T2}, 15\ns_lshl_b32 {T3}, {T1}, 8\ns_add_u32 s31, s31, {T3}\ns_lshl_b32 s61, {T1}, 16\ns_lshl_b32 {T2}, {T2}, 6\ns_add_u32 s61, s61, {T2}\ns_add_u32 s61, s61, {GA}")
    W2R, W2P = 160, 192
    a(f"s_cmp_ge_u32 {A_}, 28\ns_cbranch_scc1 L_noglu1")
    def g1_issue(k):
        b = WB + 16 * k
        if k: a(f"s_add_u32 s28, s28, 7168")
        a(f"buffer_load_dwordx4 v[{b}:{b+3}], v6, {s1}, s28 offen nt\nbuffer_load_dwordx4 v[{b+4}:{b+7}], v6, {s1}, s28 offen offset:3584 nt")
        a(f"buffer_load_dwordx4 v[{b+8}:{b+11}], v6, {s3_}, s28 offen nt\nbuffer_load_dwordx4 v[{b+12}:{b+15}], v6, {s3_}, s28 offen offset:3584 nt")
    for k in range(gth): g1_issue(k)
    for k in range(4):
        b = WB + 16 * k
        a(f"s_waitcnt vmcnt({4*(min(k+gth,4)-k-1)}) lgkmcnt(0)")
        if k + gth < 4: g1_issue(k + gth)
        pairdot(b, b + 4, f"v{24+k}", ACC, k == 0); pairdot(b + 8, b + 12, f"v{24+k}", ACC + 8, k == 0)
    redscat8(ACC, "v56"); redscat8(ACC + 8, "v57")
    a("L_noglu1:")
    stamp(6)
    wait_lds("L_wtrg", TRG, tsleep, SPIN * 8)
    stamp(7)
    a(f"s_cmp_ge_u32 {A_}, 28\ns_cbranch_scc1 L_noglu2")
    a(f"buffer_store_dwordx4 v[56:59], v23, {sW}, s30 offen sc1\ns_add_u32 s30, s29, 4096\ns_mov_b32 {SPN}, {SPIN}")
    def w2_loads():
        for i in range(32):
            if i and i % 4 == 0: a(f"s_add_u32 s31, s31, 4096")
            a(f"buffer_load_dword v{W2R+i}, v7, {s2_}, s31 offen offset:{1024*(i%4)} nt")
    def w2_perm():
        for k in range(16): a(f"v_perm_b32 v{W2P+2*k}, v{W2R+2*k+1}, v{W2R+2*k}, {SELL}\nv_perm_b32 v{W2P+2*k+1}, v{W2R+2*k+1}, v{W2R+2*k}, {SELH}")
    def w2_dot():
        for k in range(16):
            for c in range(2): a(f"v_dot2c_f32_bf16_dpp v{96+2*(k&1)+c}, v{88+(k>>3)}, v{W2P+2*k+c} row_newbcast:{2*(k&7)} {FULL}")
        a(f"v_add_f32 v100, v96, v98\nv_add_f32 v101, v97, v99")
    if not w2late: w2_loads()
    if THR2:
        wait_lds("L_wtr2", TR2, 1, SPIN * 8)
        a(f"s_mov_b32 {SPN}, {SPIN}")
    a(f"v_mov_b32 v96, 0\nv_mov_b32 v97, 0\nv_mov_b32 v98, 0\nv_mov_b32 v99, 0\nv_mov_b32 v102, {vN0}\nv_mov_b32 v103, {vN1}\nL_pollh:")
    for i in range(4): a(f"buffer_load_dwordx4 v[{72+4*i}:{75+4*i}], {vG1}, {sW}, {('s29','s30')[i>>1]} offen offset:{2048*(i&1)} sc1")
    a(f"s_sub_u32 {SPN}, {SPN}, 1\ns_cbranch_scc1 L_pollh_done\ns_waitcnt vmcnt(0)")
    tagcheck([74, 78, 82, 86], "v88")
    a("v_cmp_ne_u32 vcc, 0, v88\ns_cbranch_vccnz L_pollh\nL_pollh_done:\ns_waitcnt vmcnt(0)")
    if not w2late: w2_perm()
    a("v_add_f32 v88, v72, v76\nv_add_f32 v89, v73, v77\nv_add_f32 v90, v80, v84\nv_add_f32 v91, v81, v85")
    a("v_add_f32 v88, v88, v90\nv_add_f32 v89, v89, v91\nv_permlane32_swap_b32 v88, v89\nv_add_f32 v89, v88, v89\nv_mov_b32 v88, v89\nv_permlane32_swap_b32 v88, v89")
    bfr("v88"); bfr("v89"); silu_bf("v88", "v90")
    a(f"v_mul_f32 v88, v88, v89\nv_mov_b32_dpp v89, v88 quad_perm:[1,1,3,3] {FULL}\nv_cvt_pk_bf16_f32 v89, v88, v89\nv_mov_b32 v88, v89\nv_permlane16_swap_b32 v88, v89")
    if not w2late: w2_dot()
    a("L_noglu2:")
    if not w2late: wo_issue()
    stamp(3)
    a("L_tail:")
    a(f"s_waitcnt lgkmcnt(0)\nv_mov_b32 v39, {vN0}\ns_barrier")
    stamp(8)
    for s_ in range(3): a(f"ds_read_b64 v[{20+2*s_}:{21+2*s_}], {vA2} offset:{MLB+32*s_}")
    for s_ in range(3): a(f"ds_read_b128 v[{72+4*s_}:{75+4*s_}], {vA1} offset:{OB+OBS*s_}")
    a("s_waitcnt lgkmcnt(3)\nv_max3_f32 v32, v20, v22, v24")
    for s_ in range(3): a(f"v_sub_f32 v{20+2*s_}, v{20+2*s_}, v32")
    for s_ in range(3): a(f"v_exp_f32 v{20+2*s_}, v{20+2*s_}")
    a("v_mul_f32 v33, v21, v20\nv_fmac_f32 v33, v23, v22\nv_fmac_f32 v33, v25, v24\ns_mov_b32 exec_hi, 0")
    a("s_waitcnt lgkmcnt(1)")
    for i in range(4): a(f"v_mul_f32 v{72+i}, v{72+i}, v20")
    for i in range(4): a(f"v_fmac_f32 v{72+i}, v{76+i}, v22")
    a("v_cndmask_b32 v38, v32, v33, s[82:83]\ns_waitcnt lgkmcnt(0)")
    for i in range(4): a(f"v_fmac_f32 v{72+i}, v{80+i}, v24")
    a("v_cvt_pk_bf16_f32 v36, v72, v73\nv_cvt_pk_bf16_f32 v37, v74, v75")
    a(f"buffer_store_dwordx4 v[36:39], {vA3}, {sW}, s76 offen sc1\ns_mov_b64 exec, -1")
    stamp(9)
    def h1_load(i): a(f"buffer_load_dwordx4 v[{20+4*i}:{23+4*i}], {vH1}, {sW}, s78 offen offset:{2048*i} sc1")
    PW = 52
    def wo_perm():
        for i in range(8): a(f"v_permlane32_swap_b32 v{vW+2*i}, v{vW+2*i+1}")
        for i in range(8): a(f"v_perm_b32 v{PW+2*i}, v{vW+2*i+1}, v{vW+2*i}, {SELL}\nv_perm_b32 v{PW+2*i+1}, v{vW+2*i+1}, v{vW+2*i}, {SELH}")
    a(f"s_mov_b32 {SPN}, {SPIN}\nv_mov_b32 v44, 0\nv_mov_b32 v45, 0\nv_mov_b32 v46, 0\nv_mov_b32 v47, 0\nv_mov_b32 v70, {vN0}\nv_mov_b32 v71, {vN1}")
    if w2late:
        a(f"s_cmp_lg_u32 s3, 0\ns_cbranch_scc1 L_wop")
        wo_issue()
        a(f"s_cmp_ge_u32 {A_}, 28\ns_cbranch_scc1 L_wop0")
        w2_loads()
        a("s_waitcnt vmcnt(32)"); wo_perm()
        for i in range(2): h1_load(i)
        a("s_waitcnt vmcnt(2)"); w2_perm(); w2_dot()
        a(f"buffer_store_dwordx4 v[100:103], {vA6}, {sW}, s61 offen sc1\ns_waitcnt vmcnt(1)\ns_branch L_poll1c")
        a("L_wop0:\ns_waitcnt vmcnt(0)\nL_wop:")
    a("s_waitcnt vmcnt(1)")
    wo_perm()
    for i in range(2): h1_load(i)
    if not w2late:
        a(f"s_cmp_lg_u32 s3, 0\ns_cbranch_scc1 L_poll1\ns_cmp_ge_u32 {A_}, 28\ns_cbranch_scc1 L_poll1")
        a(f"buffer_store_dwordx4 v[100:103], {vA6}, {sW}, s61 offen sc1\ns_waitcnt vmcnt(1)\ns_branch L_poll1c")
    def repoll(name, loadf, n):
        if n == 4: a(f"s_or_b64 s[66:67], {CM[0]}, {CM[1]}\ns_or_b64 s[68:69], {CM[2]}, {CM[3]}\ns_or_b64 s[66:67], s[66:67], s[68:69]\ns_cbranch_scc0 {name}_done")
        else: a(f"s_or_b64 s[66:67], {CM[0]}, {CM[1]}\ns_cbranch_scc0 {name}_done")
        a(f"s_sub_u32 {SPN}, {SPN}, 1\ns_cbranch_scc1 {name}_done")
        for i in range(n):
            a(f"s_cmp_eq_u64 {CM[i]}, 0\ns_cbranch_scc1 {name}_s{i}")
            loadf(i)
            a(f"{name}_s{i}:")
        a(f"s_branch {name}\n{name}_done:")
    a("L_poll1:\ns_waitcnt vmcnt(0)\nL_poll1c:")
    for i in range(2): a(f"v_cmp_ne_u32 {CM[i]}, v{23+4*i}, {vN0}")
    for i in range(2): a(f"v_mov_b32_dpp v{36+i}, v{22+4*i} quad_perm:[0,0,2,2] {FULL}")
    a("v_lshlrev_b32 v28, 16, v20\nv_max_f32 v41, v36, v37\nv_and_b32 v29, 0xffff0000, v20\nv_lshlrev_b32 v30, 16, v21")
    repoll("L_poll1", h1_load, 2)
    stamp(10)
    def g_load(i):
        if i == 3: a("s_mov_b32 exec_hi, 0")
        a(f"buffer_load_dwordx4 v[{72+4*i}:{75+4*i}], {vA4}, {sW}, s87 offen offset:{1024*i} sc1")
        if i == 3: a("s_mov_b64 exec, -1")
    def g_first():
        a(f"v_mov_b32 v84, 0\nv_mov_b32 v85, 0\nv_mov_b32 v86, {vN0}\nv_mov_b32 v87, {vN1}\nbuffer_load_ushort {vX}, {vXo}, {sX}, s88 offen")
        for i in range(4): g_load(i)
    if gearly:
        a(f"s_cmp_lg_u32 s3, 1\ns_cbranch_scc1 L_nge\ns_cmp_eq_u32 {FIN}, -1\ns_cbranch_scc1 L_nge")
        g_first()
        a("L_nge:")
    a(f"v_max_f32_dpp v41, v41, v41 row_ror:4 {FULL}\nv_and_b32 v31, 0xffff0000, v21\nv_lshlrev_b32 v32, 16, v24\nv_max_f32_dpp v41, v41, v41 row_ror:8 {FULL}")
    a("v_mov_b32 v42, v41\nv_and_b32 v33, 0xffff0000, v24\nv_lshlrev_b32 v34, 16, v25\nv_permlane16_swap_b32 v42, v41\nv_max_f32 v41, v41, v42")
    a("v_mov_b32 v42, v41\nv_and_b32 v35, 0xffff0000, v25\ns_nop 0\nv_permlane32_swap_b32 v42, v41\nv_max_f32 v41, v41, v42")
    a("v_sub_f32 v36, v36, v41\nv_sub_f32 v37, v37, v41\nv_exp_f32 v36, v36\nv_exp_f32 v37, v37")
    for r in (28, 29, 30, 31, 22): a(f"v_mul_f32 v{r}, v{r}, v36")
    for r in (28, 29, 30, 31, 22): a(f"v_fmac_f32 v{r}, v{r+4}, v37")
    a("v_permlane32_swap_b32 v28, v29\nv_mov_b32 v26, v22\nv_permlane32_swap_b32 v30, v31\nv_add_f32 v28, v28, v29\nv_permlane32_swap_b32 v26, v22\nv_add_f32 v30, v30, v31\nv_add_f32 v22, v22, v26")
    a("v_mov_b32 v26, v22\nv_permlane16_swap_b32 v28, v30\nv_add_f32 v28, v28, v30\nv_permlane16_swap_b32 v26, v22\nv_add_f32 v22, v22, v26")
    for n in (4, 8): a(f"v_add_f32_dpp v28, v28, v28 row_ror:{n} {FULL}\nv_add_f32_dpp v22, v22, v22 row_ror:{n} {FULL}")
    a(f"v_rcp_f32_dpp v22, v22 quad_perm:[1,1,3,3] {FULL}\nv_mul_f32 v28, v28, v22\nv_mov_b32 v29, v28\nv_permlane32_swap_b32 v29, v28\nv_cvt_pk_bf16_f32 v28, v29, v28\nv_mov_b32 v29, v28\nv_permlane16_swap_b32 v29, v28")
    for k in range(8):
        for c in range(2): a(f"v_dot2c_f32_bf16_dpp v{44+2*(k&1)+c}, v{29-(k&1)}, v{PW+2*k+c} row_newbcast:{k>>1} {FULL}")
    a(f"v_add_f32 v44, v44, v46\nv_add_f32 v45, v45, v47\nds_write_b64 {vA5}, v[44:45] offset:{SX}\ns_waitcnt lgkmcnt(0)\ns_barrier")
    a("s_cmp_lg_u32 s3, 0\ns_cbranch_scc1 L_notpub")
    for w in range(4): a(f"ds_read_b64 v[{20+2*w}:{21+2*w}], {vL8} offset:{SX+512*w}")
    a("s_waitcnt lgkmcnt(2)\nv_add_f32 v20, v20, v22\nv_add_f32 v21, v21, v23\ns_waitcnt lgkmcnt(0)\nv_add_f32 v24, v24, v26\nv_add_f32 v25, v25, v27\nv_add_f32 v68, v20, v24\nv_add_f32 v69, v21, v25")
    a(f"buffer_store_dwordx4 v[68:71], {vA6}, {sW}, s80 offen sc1")
    stamp(11)
    a("s_branch L_done\nL_notpub:")
    a(f"s_cmp_lg_u32 s3, 1\ns_cbranch_scc1 L_done\ns_cmp_eq_u32 {FIN}, -1\ns_cbranch_scc1 L_done")
    def red2(c, tmp):
        a(f"v_permlane32_swap_b32 v{c}, v{c+1}\nv_add_f32 v{c}, v{c}, v{c+1}\nv_mov_b32 {tmp}, v{c}\nv_permlane16_swap_b32 {tmp}, v{c}\nv_add_f32 v{c}, v{c}, {tmp}")
        a(f"v_add_f32_dpp v{c}, v{c}, v{c} row_ror:4 {FULL}\nv_add_f32_dpp v{c}, v{c}, v{c} row_ror:8 {FULL}")
    def h2_load(i): a(f"buffer_load_dwordx4 v[{20+4*i}:{23+4*i}], {vA4}, {sW}, s81 offen offset:{1024*i} sc1")
    a(f"s_mov_b32 {SPN}, {SPIN}")
    if not gearly: g_first()
    if h2o == 0:
        for i in range(4): h2_load(i)
        a("s_waitcnt vmcnt(4)\ns_branch L_pollgc")
    a("L_pollg:\ns_waitcnt vmcnt(0)\nL_pollgc:")
    for i in range(4): a(f"v_cmp_ne_u64 {CM[i]}, v[{74+4*i}:{75+4*i}], v[138:139]")
    a("v_add_f32 v42, v72, v76\nv_add_f32 v43, v73, v77\nv_add_f32 v40, v80, v84\nv_add_f32 v41, v81, v85")
    repoll("L_pollg", g_load, 4)
    def nonce_store():
        a(f"s_cmp_lg_u32 {FIN}, 0\ns_cbranch_scc1 L_nonon\ns_mov_b32 {T0}, {NON}\ns_mov_b64 exec, 1\nbuffer_store_dwordx2 v[138:139], {vZ}, {sW}, {T0} offen sc1\ns_mov_b64 exec, -1\nL_nonon:")
    if nearly: nonce_store()
    a("v_add_f32 v42, v42, v40\nv_add_f32 v43, v43, v41")
    if h2o == 1:
        for i in range(4): h2_load(i)
    red2(42, "v41")
    bfr("v42"); silu_bf("v42", "v43"); a(f"v_lshlrev_b32 {vX}, 16, {vX}")
    if h2s: a(f"s_sleep {h2s}")
    if h2o == 2:
        for i in range(4): h2_load(i)
    stamp(15)
    a(f"s_mov_b32 {SPN}, {SPIN}\nL_poll2:\ns_waitcnt vmcnt(0)")
    for i in range(4): a(f"v_cmp_ne_u64 {CM[i]}, v[{22+4*i}:{23+4*i}], v[138:139]")
    a("v_add_f32 v38, v20, v24\nv_add_f32 v39, v21, v25\nv_add_f32 v36, v28, v32\nv_add_f32 v37, v29, v33")
    repoll("L_poll2", h2_load, 4)
    stamp(12)
    a("v_add_f32 v20, v38, v36\nv_add_f32 v21, v39, v37")
    red2(20, "v22")
    bfr("v20"); a("v_mul_f32 v20, v20, v42"); bfr("v20"); a(f"v_add_f32 v20, v20, {vX}\nv_cvt_pk_bf16_f32 v20, v20, v20")
    a(f"s_mov_b32 exec_lo, 15\ns_mov_b32 exec_hi, 15\nbuffer_store_short v20, {vXo}, {sY}, s88 offen {outsc}\ns_mov_b64 exec, -1")
    if not nearly: nonce_store()
    a("L_done:")
    if dbg:
        stamp(13)
        a("s_getreg_b32 s98, hwreg(HW_REG_XCC_ID)")
        a(f"v_writelane_b32 {VDBG}, s98, 14")
        a(f"s_lshl_b32 {T0}, s2, 2\ns_add_u32 {T0}, {T0}, s3\ns_lshl_b32 {T0}, {T0}, 8\ns_add_u32 {T0}, {T0}, {DBG}\ns_sub_u32 s16, s16, {wsb}\ns_subb_u32 s17, s17, 0\nv_lshlrev_b32 v12, 2, v0\nbuffer_store_dword {VDBG}, v12, {sW}, {T0} offen\ns_add_u32 {T0}, {T0}, 0x40000\nbuffer_store_dword v246, v12, {sW}, {T0} offen")
    a("L_end:\ns_endpgm")
    a.pad()
    a('.section .rodata,"a"\n.p2align 6')
    a(f".amdhsa_kernel {KN}_kernel")
    a("""  .amdhsa_next_free_vgpr 512
  .amdhsa_next_free_sgpr 102
  .amdhsa_accum_offset 256
  .amdhsa_group_segment_fixed_size 0
  .amdhsa_kernarg_size 96
  .amdhsa_user_sgpr_count 2
  .amdhsa_user_sgpr_kernarg_segment_ptr 1
  .amdhsa_system_sgpr_workgroup_id_x 1
  .amdhsa_float_denorm_mode_32 3
.end_amdhsa_kernel""")
    return a.text()
if __name__ == "__main__":
    kw = eval("dict(%s)" % (sys.argv[2] if len(sys.argv) > 2 else ""))
    open(sys.argv[1], "w").write(gen(**kw))
```

```python
import sys
from asmlib import *
KN = "recurrent_scan__gqa_block_cached__glu_gated_swiglu__decode"
QP, TK, NON, GP1, GA, H1, H2, DBG = 0x0, 0x20000, 0x28000, 0x30000, 0x70000, 0xC0000, 0x140000, 0x400000
XN, QL, NL, TRG, QT, TR2, MLB, OB = 0, 1024, 2048, 2056, 2060, 2064, 2080, 2176
SX = 0
OBS = 2112
LDS_BYTES = OB + 3 * OBS
SPIN = 1 << 20
FULL = "row_mask:0xf bank_mask:0xf"

def gen(P=7, E=4, NTOT=37, THR=26, MQ=7, dbg=False, wsb=0, tsleep=4, gearly=False, al=0, h2o=2, h2s=0, h1s=1, THH=36, ckearly=True, nearly=True, outsc='sc1', gth=4, noq=0, THR2=0, w2late=False, touch=0, pre=7, prewhen=2):
    a = Asm()
    hdr = open("cdna_kernels/" + KN + ".s.ref").read().split("; Override launch")[0]
    a.L += hdr.rstrip().split("\n")
    a(f"; @launch grid=(256,1,1) block=(256,1,1) lds={LDS_BYTES}")
    a("""; ---------------------------------------------------------------------------------------------------------
; ---------------------------------------------------------------------------------------------------------""")
    a('.amdgcn_target "amdgcn-amd-amdhsa--gfx950"\n.text')
    if al: a(f".p2align {al}")
    a(f".globl {KN}_kernel\n.p2align 8\n.type {KN}_kernel,@function\n{KN}_kernel:")
    sK, sV, sW, sO = "s[8:11]", "s[12:15]", "s[16:19]", "s[20:23]"
    sQ, sX, sY, s1, s3_, s2_ = "s[24:27]", "s[32:35]", "s[36:39]", "s[40:43]", "s[44:47]", "s[48:51]"
    X_, A_, H_, SUB, J_, FIN = "s52", "s53", "s54", "s55", "s56", "s59"
    CUR, CNT, ATT, DD, HB, QS, TKT = "s30", "s60", "s61", "s31", "s28", "s29", "s86"
    CTR, RET = "s[62:63]", "s[64:65]"
    T0, T1, T2, T3 = "s66", "s67", "s68", "s69"
    SELL, SELH, SCALE, LOG2E, SPN, JR = "s70", "s71", "s72", "s73", "s74", "s77"
    CM = ["s[90:91]", "s[92:93]", "s[94:95]", "s[84:85]", "s[4:5]", "s[6:7]", "s[26:27]", "s[24:25]"]
    VDBG = "v3"
    def stamp(k):
        if dbg: a(f"s_memrealtime s[98:99]\ns_waitcnt lgkmcnt(0)\nv_writelane_b32 {VDBG}, s98, {k}")
    def srd(base, n): a(f"s_mov_b32 s{base+2}, {hex(n)}\ns_mov_b32 s{base+3}, 0x20000")
    def bfr(r): a(f"v_cvt_pk_bf16_f32 {r}, {r}, {r}\nv_lshlrev_b32 {r}, 16, {r}")
    def silu_bf(r, tmp):
        a(f"v_mul_f32 {tmp}, {LOG2E}, {r}\nv_exp_f32 {tmp}, -{tmp}\nv_add_f32 {tmp}, 1.0, {tmp}\nv_rcp_f32 {tmp}, {tmp}\nv_mul_f32 {r}, {r}, {tmp}"); bfr(r)
    a(f"s_lshr_b32 {A_}, s2, 3\ns_cmp_ge_u32 {A_}, 32\ns_cbranch_scc1 L_end")
    for base, off in ((8, 8), (12, 16), (24, 24), (32, 0), (16, 88)): a(f"s_load_dwordx2 s[{base}:{base+1}], s[0:1], {off}")
    a("v_readfirstlane_b32 s3, v0\nv_and_b32 v0, 63, v0")
    if dbg: a("s_memrealtime s[96:97]")
    a(f"s_and_b32 {X_}, s2, 7\ns_and_b32 {H_}, {A_}, 7\ns_lshr_b32 {SUB}, {A_}, 3\ns_lshr_b32 s3, s3, 6\ns_cbranch_scc1 L_stream")
    def late_setup():
        for base, off in ((20, 32), (36, 72), (40, 48), (44, 56), (48, 64)): a(f"s_load_dwordx2 s[{base}:{base+1}], s[0:1], {off}")
        for base, n in ((20, 0x400000), (36, 1024), (40, 512*3584), (44, 512*3584), (48, 1792*1024)): srd(base, n)
        a(f"s_mov_b32 {SELL}, 0x05040100\ns_mov_b32 {SELH}, 0x07060302\ns_mov_b32 {SCALE}, {fhex(128**-0.5)}\ns_mov_b32 {LOG2E}, {fhex(1.4426950408889634)}")
        a(f"s_lshl_b32 {J_}, {SUB}, 3\ns_add_u32 {J_}, {J_}, {X_}\ns_lshl_b32 {JR}, {X_}, 2\ns_add_u32 {JR}, {JR}, {SUB}")
        a(f"s_sub_u32 {T0}, {X_}, {A_}\ns_and_b32 {T0}, {T0}, 7\ns_cmp_eq_u32 {T0}, 4\ns_cselect_b32 {FIN}, {A_}, -1")
    vL16, vr, vc, WB, ACC = "v2", "v4", "v5", 64, 40
    a(f"s_getpc_b64 s[4:5]\nL_pc:\ns_lshl_b32 s6, {A_}, 7\nv_lshl_add_u32 v2, v0, 12, s6\nv_cmp_gt_u32 vcc, L_end-L_pc, v2\ns_setprio 3\ns_mov_b64 exec, vcc\nglobal_load_dword v247, v2, s[4:5]\ns_mov_b64 exec, -1")
    a(f"v_lshlrev_b32 {vL16}, 4, v0\nv_lshrrev_b32 {vr}, 3, v0\nv_and_b32 {vc}, 7, v0\nv_lshlrev_b32 v6, 17, {vr}\nv_lshl_add_u32 v6, {vc}, 4, v6\nv_mov_b32 v21, 0\nv_mov_b32 v20, {TRG}")
    srd(24, 0x400000); srd(32, 1024); srd(16, 0x20000000 - wsb)
    a(f"s_lshl_b32 {T0}, {SUB}, 20\ns_lshl_b32 {T2}, {H_}, 10\ns_add_u32 {T0}, {T0}, {T2}\ns_lshl_b32 {T2}, {X_}, 7\ns_add_u32 {T0}, {T0}, {T2}")
    a("s_waitcnt lgkmcnt(0)")
    a(f"buffer_load_dwordx4 v[8:11], {vL16}, {sX}, 0 offen\nds_write2_b32 v20, v21, v21 offset0:0 offset1:1\nds_write_b32 v20, v21 offset:8")
    for i in range(16):
        if i: a(f"s_add_u32 {T0}, {T0}, 8192")
        a(f"buffer_load_dwordx4 v[{WB+4*i}:{WB+4*i+3}], v6, {sQ}, {T0} offen nt")
    a("s_waitcnt lgkmcnt(0)\ns_barrier\ns_branch L_svc1")

    vKO, vVO, vQ = "v1", "v2", 4
    vM, vML, vL, vS, vT = "v8", "v9", "v10", "v11", ["v12", "v13", "v14", "v15"]
    vB, vD, vA, vOc, vV0 = 16, 20, 36, 52, 84
    kreg = lambda slot, i: f"a[{16*slot+4*i}:{16*slot+4*i+3}]"
    vreg = lambda slot, i: vV0 + 16 * slot + 4 * i
    a("L_stream:")
    a(f"s_lshl_b32 {HB}, {H_}, 24\ns_lshl_b32 {T0}, {X_}, 9\ns_mul_i32 {T1}, {SUB}, 3\ns_add_u32 {T0}, {T0}, {T1}\ns_add_u32 {T0}, {T0}, s3\ns_sub_u32 {T0}, {T0}, 1\ns_lshl_b32 {T0}, {T0}, 12\ns_add_u32 {CUR}, {HB}, {T0}")
    a(f"v_lshrrev_b32 v12, 4, v0\nv_lshlrev_b32 v12, 6, v12\nv_bfe_u32 v13, v0, 2, 2\nv_and_b32 v14, 3, v0\nv_lshl_add_u32 v12, v13, 8, v12\nv_lshl_add_u32 {vKO}, v14, 4, v12\nv_lshlrev_b32 {vVO}, 4, v0")
    srd(8, 0x8000000); srd(12, 0x8000000)
    TSTEP = 12 * 4096
    S0 = P + E; NS = S0 + 1; NSTAT = NTOT - NS; TB = 24 * NTOT
    assert NSTAT >= 1 and E <= P - 2
    perm = [None] * P
    perm[S0 % P] = 0; perm[(S0 + 1) % P] = 1
    fr = iter(range(2, P))
    perm = [p if p is not None else next(fr) for p in perm]
    slot_of = lambda t: perm[t % P]
    def issue(slot, i, soff):
        if i < 4: a(f"buffer_load_dwordx4 {kreg(slot, i)}, {vKO}, {sK}, {soff} offen offset:{i*1024} nt")
        else:
            r = vreg(slot, i - 4); a(f"buffer_load_dwordx4 v[{r}:{r+3}], {vVO}, {sV}, {soff} offen offset:{(i-4)*1024} nt")
    st = {"m": 0}
    def issue_group():
        m = st["m"]; t, hf = divmod(m, 2)
        if hf == 0 and t > 0: a(f"s_add_u32 {CUR}, {CUR}, {TSTEP}")
        if m >= 2: a("s_waitcnt vmcnt(4)")
        for i in range(4): issue(slot_of(t), 4 * hf + i, CUR)
        if dbg and m >= 2: a(f"s_memrealtime s[98:99]\ns_waitcnt lgkmcnt(0)\nv_writelane_b32 v246, s98, {m}")
        st["m"] = m + 1
    a("s_waitcnt lgkmcnt(0)")
    if dbg: a("s_memrealtime s[94:95]")
    a("s_barrier")
    if dbg: a("s_memrealtime s[92:93]")
    for m in range(2 * P):
        issue_group()
        if m == MQ: a("ds_write_b32 v18, v18 offset:4")
        if m == 1:
            a(f"s_add_u32 s16, s16, {wsb}\ns_addc_u32 s17, s17, 0"); srd(16, 0x20000000 - wsb); srd(32, 1024)
            late_setup()
            a(f"v_mov_b32 {vM}, 0xff7fffff\nv_mov_b32 {vML}, 0xff7fffff\nv_mov_b32 {vL}, 0\nv_mov_b32 {vS}, 0\nv_mov_b32 v18, {TRG}")
            for r in range(32): a(f"v_mov_b32 v{vOc+r}, 0")
            a(f"s_mov_b32 {CNT}, {NSTAT}\ns_mov_b32 {ATT}, 1\ns_add_u32 {DD}, s3, {X_}\ns_lshl_b32 {T0}, {H_}, 10\ns_add_u32 {T0}, {T0}, {TK}\ns_add_u32 s62, s16, {T0}\ns_addc_u32 s63, s17, 0\ns_mov_b32 {QS}, {SUB}")
            if dbg: a(f"v_mov_b32 {VDBG}, 0\nv_mov_b32 v246, 0\ns_waitcnt lgkmcnt(0)\nv_writelane_b32 {VDBG}, s96, 0\nv_writelane_b32 {VDBG}, s94, 5\nv_writelane_b32 {VDBG}, s92, 6")
    stamp(1)
    a("s_branch L_backlog")

    a("L_svc1:")
    a(f"s_add_u32 s16, s16, {wsb}\ns_addc_u32 s17, s17, 0\ns_mov_b32 {T2}, {NON}\nbuffer_load_dwordx2 v[58:59], v21, {sW}, {T2} offen sc1")
    a(f"s_lshl_b32 {T1}, {A_}, 10\ns_add_u32 {T1}, {T1}, {TK}\ns_lshl_b32 {T2}, {X_}, 7\ns_add_u32 {T1}, {T1}, {T2}")
    NST = 1
    if dbg: a(f"v_mov_b32 {VDBG}, 0\nv_mov_b32 v246, 0\nv_writelane_b32 {VDBG}, s96, 0")
    late_setup_pos = len(a.L)
    def allreduce(r, tmp, op="v_add_f32"):
        for n in (8, 4, 2, 1): a(f"{op}_dpp {r}, {r}, {r} row_ror:{n} {FULL}")
        for sw in ("16", "32"): a(f"v_mov_b32 {tmp}, {r}\nv_permlane{sw}_swap_b32 {tmp}, {r}\n{op} {r}, {r}, {tmp}")
    a(f"s_cmp_lg_u32 {X_}, 0\ns_cbranch_scc1 L_noini\ns_mov_b64 exec, 1\nbuffer_store_dword v21, v21, {sW}, {T1} offen sc1\ns_mov_b64 exec, -1\ns_waitcnt vmcnt({16+NST+1})\nL_noini:")
    late_setup()
    a(f"v_bfe_u32 v22, v0, 5, 1\nv_bfe_u32 v23, v0, 4, 1\nv_lshlrev_b32 v22, 2, v22\nv_lshl_add_u32 v22, v23, 1, v22\nv_bfe_u32 v23, v0, 3, 1\nv_add_u32 v22, v22, v23\nv_lshl_add_u32 v22, {vc}, 3, v22\nv_lshlrev_b32 v23, 3, v22")
    a(f"s_lshl_b32 {T0}, {SUB}, 8\nv_lshl_add_u32 v20, {vr}, 5, {T0}")
    a(f"s_cmp_eq_u32 {X_}, 0\ns_cbranch_scc1 L_xw\ns_waitcnt vmcnt({16+NST})\nL_xw:")
    for w in range(4): a(f"v_lshlrev_b32 v{24+2*w}, 16, v{8+w}\nv_and_b32 v{25+2*w}, 0xffff0000, v{8+w}")
    a("v_add_f32 v32, v24, v25\nv_add_f32 v33, v26, v27\nv_add_f32 v34, v28, v29\nv_add_f32 v35, v30, v31\nv_add_f32 v32, v32, v33\nv_add_f32 v34, v34, v35\nv_add_f32 v32, v32, v34")
    allreduce("v32", "v33")
    a(f"v_mul_f32 v32, {fhex(1/512)}, v32")
    for i in range(8): a(f"v_sub_f32 v{40+i}, v{24+i}, v32")
    a("v_mul_f32 v34, v40, v40\nv_mul_f32 v35, v41, v41")
    for i in range(2, 8): a(f"v_fmac_f32 v{34+(i&1)}, v{40+i}, v{40+i}")
    a("v_add_f32 v34, v34, v35")
    allreduce("v34", "v33")
    a(f"v_mul_f32 v34, {fhex(1/512)}, v34")
    bfr("v32"); bfr("v34")
    a(f"v_add_f32 v34, {fhex(1e-5)}, v34"); bfr("v34")
    a("v_sqrt_f32 v34, v34"); bfr("v34"); a("v_rcp_f32 v34, v34")
    for i in range(8): a(f"v_sub_f32 v{40+i}, v{24+i}, v32")
    for w in range(4): a(f"v_cvt_pk_bf16_f32 v{48+w}, v{40+2*w}, v{41+2*w}")
    for w in range(4): a(f"v_lshlrev_b32 v{40+2*w}, 16, v{48+w}\nv_and_b32 v{41+2*w}, 0xffff0000, v{48+w}")
    for i in range(8): a(f"v_mul_f32 v{40+i}, v{40+i}, v34")
    for w in range(4): a(f"v_cvt_pk_bf16_f32 v{48+w}, v{40+2*w}, v{41+2*w}")
    a(f"ds_write_b128 {vL16}, v[48:51] offset:{XN}")
    a(f"s_waitcnt lgkmcnt(0)\nds_read_b128 v[24:27], v20 offset:{XN}\nds_read_b128 v[28:31], v20 offset:{XN+16}\ns_waitcnt lgkmcnt(0)")
    stamp(1)
    def pairdot(r0, r1, xp, acc, first, tmps=("v60", "v61", "v62", "v63")):
        for w in range(4):
            for hh, sel in ((0, SELL), (1, SELH)):
                tm = tmps[(2*w+hh) % len(tmps)]
                a(f"v_perm_b32 {tm}, v{r1+w}, v{r0+w}, {sel}")
                a(f"v_dot2_f32_bf16 v{acc+2*w+hh}, {tm}, {xp}, {'0' if first else 'v%d' % (acc+2*w+hh)}")
    for k in range(8):
        a(f"s_waitcnt vmcnt({16-2*k-2+NST})")
        pairdot(WB + 8*k, WB + 8*k + 4, f"v{24+k}", ACC, k == 0)
    def redscat8(acc, out):
        for e in range(4): a(f"v_permlane32_swap_b32 v{acc+e}, v{acc+e+4}")
        for e in range(4): a(f"v_add_f32 v{acc+e}, v{acc+e}, v{acc+e+4}")
        for e in range(2): a(f"v_permlane16_swap_b32 v{acc+e}, v{acc+e+2}")
        for e in range(2): a(f"v_add_f32 v{acc+e}, v{acc+e}, v{acc+e+2}")
        if out:
            a(f"v_add_f32_dpp {out}, v{acc}, v{acc} row_ror:8 row_mask:0xf bank_mask:0x3\nv_add_f32_dpp {out}, v{acc+1}, v{acc+1} row_ror:8 row_mask:0xf bank_mask:0xc")
    redscat8(ACC, None)
    a(f"s_lshl_b32 {T3}, {H_}, 14\ns_lshl_b32 {T2}, {J_}, 9\ns_add_u32 {T0}, {T3}, {T2}")
    a(f"v_add_f32_dpp v56, v{ACC}, v{ACC} row_ror:8 {FULL}\nv_add_f32_dpp v57, v{ACC+1}, v{ACC+1} row_ror:8 {FULL}")
    a(f"s_mov_b32 {T1}, 1664525\ns_waitcnt vmcnt(0)\nv_mul_lo_u32 v58, v58, {T1}\nv_add_u32 v58, 0x3c6ef35f, v58")
    a(f"s_mov_b32 exec_lo, 0x00ff00ff\ns_mov_b32 exec_hi, 0x00ff00ff\n{'s_nop 0' if noq&1 else f'buffer_store_dwordx4 v[56:59], v23, {sW}, {T0} offen sc1'}\ns_mov_b64 exec, -1")
    stamp(2)
    a(f"ds_write_b64 v21, v[58:59] offset:{NL}")
    if touch:
        a(f"s_waitcnt lgkmcnt(0)\ns_mov_b64 exec, 1\ns_lshl_b32 {T0}, {H_}, 19\nbuffer_load_dword v248, v21, {sO}, {T0} offen\nbuffer_load_dword v249, v21, {sY}, 0 offen\nbuffer_load_dword v250, v21, {s2_}, 0 offen")
        a(f"s_mov_b32 {T0}, {H1}\nbuffer_load_dword v251, v21, {sW}, {T0} offen\ns_mov_b32 {T0}, {H2}\nbuffer_load_dword v252, v21, {sW}, {T0} offen\ns_mov_b64 exec, -1")
    def pretouch():
        a("; prefetch (values unused) of the scratch lines this workgroup is about to write")
        a(f"v_lshlrev_b32 v248, 12, v0\ns_mov_b64 exec, 0xffff")
        if pre & 1: a(f"s_lshl_b32 {T0}, {H_}, 16\ns_lshl_b32 {T1}, {J_}, 7\ns_add_u32 {T0}, {T0}, {T1}\ns_add_u32 {T0}, {T0}, {H1}\nbuffer_load_dword v249, v248, {sW}, {T0} offen")
        if pre & 2: a(f"s_lshl_b32 {T0}, {SUB}, 16\ns_lshl_b32 {T1}, {H_}, 3\ns_add_u32 {T1}, {T1}, {X_}\ns_lshl_b32 {T1}, {T1}, 7\ns_add_u32 {T0}, {T0}, {T1}\ns_add_u32 {T0}, {T0}, {H2}\ns_mov_b64 exec, 0xff\nv_lshlrev_b32 v248, 13, v0\nbuffer_load_dword v250, v248, {sW}, {T0} offen")
        if pre & 4: a(f"s_and_b32 {T0}, {X_}, 3\ns_lshl_b32 {T0}, {T0}, 16\ns_lshr_b32 {T1}, {X_}, 2\ns_lshl_b32 {T2}, {A_}, 1\ns_add_u32 {T1}, {T1}, {T2}\ns_lshl_b32 {T1}, {T1}, 7\ns_add_u32 {T0}, {T0}, {T1}\ns_add_u32 {T0}, {T0}, {GA}\nbuffer_load_dword v251, v248, {sW}, {T0} offen")
        a("s_mov_b64 exec, -1")
    if pre and prewhen == 0: pretouch()
    def tagcheck(regs, acc):
        for n, r in enumerate(regs):
            a(f"v_xor_b32 {acc}, v{r}, v58" if n == 0 else f"v_bitop3_b32 {acc}, v{r}, v58, {acc} bitop3:0xbe")
            a(f"v_bitop3_b32 {acc}, v{r+1}, v59, {acc} bitop3:0xbe")
    def wait_lds(name, off, sleep, bound):
        a(f"s_mov_b32 {SPN}, {bound}\n{name}:\ns_sleep {sleep}\nds_read_b32 v33, v21 offset:{off}\ns_sub_u32 {SPN}, {SPN}, 1\ns_cbranch_scc1 {name}_d\ns_waitcnt lgkmcnt(0)\nv_cmp_eq_u32 vcc, 0, v33\ns_cbranch_vccnz {name}\n{name}_d:\ns_waitcnt lgkmcnt(0)")
    wait_lds("L_wq", QT, 1, SPIN)
    if noq & 2: a("s_sleep 30\ns_branch L_pollq_done")
    if noq & 4: a(f"s_mov_b32 {SPN}, 0\ns_branch L_pollq")
    a(f"s_mov_b32 {SPN}, {SPIN}\nL_pollq:\ns_mov_b32 {T0}, {T3}")
    for rb in range(4):
        if rb: a(f"s_add_u32 {T0}, {T0}, 4096")
        for k in range(4): a(f"buffer_load_dwordx4 v[{WB+16*rb+4*k}:{WB+16*rb+4*k+3}], {vL16}, {sW}, {T0} offen offset:{1024*k} sc1")
    a(f"s_sub_u32 {SPN}, {SPN}, 1\ns_cbranch_scc1 L_pollq_done\ns_waitcnt vmcnt(0)")
    tagcheck([WB + 4 * k + 2 for k in range(16)], "v33")
    a("v_cmp_ne_u32 vcc, 0, v33\ns_cbranch_vccnz L_pollq\nL_pollq_done:\ns_waitcnt vmcnt(0)")
    stamp(4)
    for k in range(4):
        for e in range(2):
            r = WB + 4 * k + e
            a(f"v_add_f32 v{r}, v{r}, v{r+16}\nv_add_f32 v{r+32}, v{r+32}, v{r+48}\nv_add_f32 v{r}, v{r}, v{r+32}")
    a("v_lshrrev_b32 v34, 2, v0\nv_and_b32 v35, 3, v0\nv_lshlrev_b32 v34, 6, v34\nv_lshl_add_u32 v34, v35, 2, v34")
    for w in range(4): a(f"v_cvt_pk_bf16_f32 v{48+w}, v{WB+4*w}, v{WB+4*w+1}")
    for w in range(4): a(f"ds_write_b32 v34, v{48+w} offset:{QL+16*w}")
    a(f"s_waitcnt lgkmcnt(0)\ns_barrier\ns_setprio 0\ns_branch L_svc2")

    a(f"L_backlog:\ns_barrier\nds_read_b128 v[{vQ}:{vQ+3}], {vVO} offset:{QL}\ns_waitcnt lgkmcnt(0)")
    stamp(2)
    uid = [0]
    def softmax(last):
        t = vT[0]; uid[0] += 1
        a(f"v_cvt_pk_bf16_f32 {t}, {vS}, {vS}\nv_lshlrev_b32 {t}, 16, {t}\nv_mul_f32 {t}, {SCALE}, {t}\nv_cvt_pk_bf16_f32 {t}, {t}, {t}\nv_lshlrev_b32 {t}, 16, {t}")
        a(f"v_cmp_gt_f32 vcc, {t}, {vM}\ns_cbranch_vccz L_nr{uid[0]}\ns_call_b64 {RET}, L_rescale\nL_nr{uid[0]}:")
        a(f"v_fma_f32 {t}, {t}, {LOG2E}, -{vML}\nv_exp_f32 {t}, {t}\nv_add_f32 {vL}, {vL}, {t}")
        a(f"v_mov_b32_dpp {vT[1]}, {t} row_ror:12 {FULL}\nv_cvt_pk_bf16_f32 v{vB}, {t}, {vT[1]}\nv_mov_b32_dpp v{vB+1}, v{vB} row_ror:8 {FULL}")
        if last:
            a(f"v_add_f32_dpp v19, {vL}, {vL} row_ror:4 {FULL}\nv_add_f32_dpp v19, v19, v19 row_ror:8 {FULL}")
            for sw in ("16", "32"):
                a(f"v_mov_b32 {vT[2]}, v19\nv_permlane{sw}_swap_b32 {vT[2]}, v19\nv_add_f32 v19, v19, {vT[2]}")
    def kpart(sl, last=False):
        for sg in range(4): a(f"v_mfma_f32_16x16x32_bf16 v[{vD+4*sg}:{vD+4*sg+3}], {kreg(sl, sg)}, v[{vQ}:{vQ+3}], 0")
        for k in range(3):
            for sg in range(4):
                d = vD + 4 * sg; u = [u for u in range(4) if u != sg][k]
                a(f"v_add_f32_dpp {vS if k == 2 else vT[sg]}, v{d+u}, {f'v{d+sg}' if k == 0 else vT[sg]} row_ror:{(4*(sg-u))%16} row_mask:0xf bank_mask:{hex(1<<sg)}")
        softmax(last)
    def pv(slot, h):
        r0, r1 = vreg(slot, 2 * h), vreg(slot, 2 * h + 1)
        perms = []
        for w in range(4):
            perms.append(f"v_perm_b32 v{vA+2*(2*w)+h}, v{r1+w}, v{r0+w}, {SELL}")
            perms.append(f"v_perm_b32 v{vA+2*(2*w+1)+h}, v{r1+w}, v{r0+w}, {SELH}")
        if h == 0:
            for p in perms: a(p)
        else:
            mf = [f"v_mfma_f32_16x16x16_bf16 v[{vOc+4*e}:{vOc+4*e+3}], v[{vA+2*e}:{vA+2*e+1}], v[{vB}:{vB+1}], v[{vOc+4*e}:{vOc+4*e+3}]" for e in range(8)]
            for k in range(8):
                a(perms[k])
                if k >= 2: a(mf[k-2])
            a(mf[6]); a(mf[7])
    final_m = 2 * S0 + 2
    def wait_for(n):
        w = 4 * (st["m"] - n - 1)
        if w < 63: a(f"s_waitcnt vmcnt({w})")
    for t in range(S0):
        sl = slot_of(t)
        wait_for(2 * t); kpart(sl)
        wait_for(2 * t + 1); pv(sl, 0); pv(sl, 1)
        for _ in range(99 if t == S0 - 1 else 1):
            if st["m"] >= final_m or st["m"] - 2 * P > 2 * t + 1: break
            issue_group()
    assert st["m"] == final_m
    stamp(3)
    if dbg: a("s_mov_b32 s93, 16\ns_mov_b32 s94, s98")
    vW = vreg(2, 0)
    vN0, vN1, vA1, vA2, vA3, vA4, vA5, vA6, vXo, vX, vZ, vLW, vLM, vL8, vU0, vU1, vWo, vG1, vH1 = (f"v{r}" for r in range(138, 157))
    def wo_issue():
        for i in range(8):
            if i: a(f"s_add_u32 s89, s89, 16384")
            a(f"buffer_load_dwordx2 v[{vW+2*i}:{vW+2*i+1}], {vWo}, {sO}, s89 offen nt")
    def tail_prep():
        a(f"s_lshl_b32 {T0}, {H_}, 2\ns_lshr_b32 {T1}, {JR}, 3\ns_add_u32 {T0}, {T0}, {T1}\ns_lshl_b32 {T2}, {T0}, 3\ns_and_b32 {T1}, {JR}, 4\ns_add_u32 {T1}, {T1}, s3\ns_add_u32 {T2}, {T2}, {T1}")
        a(f"s_lshl_b32 {T0}, {T0}, 7\ns_add_u32 {T0}, {T0}, {T1}\ns_lshl_b32 {T0}, {T0}, 10\ns_and_b32 {T1}, {JR}, 3\ns_lshl_b32 {T3}, {T1}, 8\ns_add_u32 s89, {T0}, {T3}")
        a(f"v_lshrrev_b32 {vU0}, 5, v0\nv_and_b32 {vU1}, 31, v0\nv_lshlrev_b32 {vWo}, 13, {vU0}\nv_lshl_add_u32 {vWo}, {vU1}, 3, {vWo}")
        a(f"s_lshr_b32 s78, {T2}, 1\ns_lshl_b32 s78, s78, 12\ns_and_b32 {T0}, {T2}, 1\ns_lshl_b32 {T0}, {T0}, 6\ns_add_u32 s78, s78, {T0}\ns_add_u32 s78, s78, {H1}")
        a(f"s_lshl_b32 s80, {T1}, 16\ns_lshl_b32 {T0}, {H_}, 3\ns_add_u32 {T0}, {T0}, {X_}\ns_lshl_b32 {T0}, {T0}, 7\ns_add_u32 s80, s80, {T0}\ns_add_u32 s80, s80, {H2}")
        a(f"s_lshl_b32 s88, {A_}, 5\ns_lshl_b32 {T0}, {A_}, 13\ns_add_u32 s81, {T0}, {H2}\ns_add_u32 s87, {T0}, {GA}")
        a(f"s_lshl_b32 s76, {H_}, 16\ns_lshl_b32 {T0}, s3, 14\ns_add_u32 s76, s76, {T0}\ns_lshl_b32 {T0}, {J_}, 7\ns_add_u32 s76, s76, {T0}\ns_add_u32 s76, s76, {H1}")
        a("s_mov_b32 s82, 0xaaaaaaaa\ns_mov_b32 s83, 0xaaaaaaaa")
        a(f"v_mov_b32 {vZ}, 0\nds_read_b64 v[138:139], {vZ} offset:{NL}")
        a(f"s_lshl_b32 {T0}, s3, 9\nv_lshl_add_u32 {vA5}, {vU1}, 1, {vU0}\nv_lshl_add_u32 {vA5}, {vA5}, 3, {T0}\nv_lshlrev_b32 {vG1}, 4, {vU1}\nv_lshl_add_u32 {vG1}, {vU0}, 10, {vG1}")
        a(f"s_mul_i32 {T0}, s3, 528\nv_lshl_add_u32 {vA1}, {vU1}, 4, {T0}")
        a(f"v_and_b32 {vU1}, 7, v0\nv_lshl_add_u32 {vXo}, {vU1}, 1, {vU0}\nv_lshlrev_b32 {vXo}, 1, {vXo}\nv_lshrrev_b32 {vU0}, 3, v0\nv_lshlrev_b32 {vU1}, 4, {vU1}\nv_lshl_add_u32 {vA6}, {vU0}, 13, {vU1}\nv_lshl_add_u32 {vA3}, {vU0}, 12, {vU1}\nv_and_b32 {vU1}, 3, v0")
        a(f"v_lshrrev_b32 {vU0}, 2, v0\nv_lshlrev_b32 {vH1}, 7, {vU0}\nv_lshl_add_u32 {vH1}, {vU1}, 4, {vH1}")
        a(f"s_sub_u32 {T0}, s3, 1\ns_mul_i32 {T1}, {T0}, {OBS}\ns_lshl_b32 {T0}, {T0}, 5\ns_add_u32 {T0}, {T0}, {MLB}")
        a(f"v_lshl_add_u32 {vLM}, {vU1}, 3, {T0}\nv_mul_u32_u24 {vLW}, 528, {vU1}\nv_lshrrev_b32 {vU0}, 4, v0\nv_lshl_add_u32 {vLW}, {vU0}, 4, {vLW}\nv_add_u32 {vLW}, {T1}, {vLW}")
        a(f"v_lshlrev_b32 {vL8}, 3, v0\ns_lshl_b32 {T0}, s3, 3\nv_mov_b32 {vA2}, {T0}\nv_lshlrev_b32 {vA4}, 4, v0")
    def request():
        a(f"s_add_u32 {DD}, {DD}, 1\ns_and_b32 {QS}, {DD}, 3\ns_cmp_eq_u32 {ATT}, 0\ns_cselect_b32 {QS}, {SUB}, {QS}\ns_lshl_b32 {T0}, {QS}, 13\ns_mov_b32 {TKT}, 1\ns_atomic_add {TKT}, {CTR}, {T0} glc")
    for rho in (0, 1):
        a(f"L_loop{rho}:\ns_waitcnt vmcnt(4)")
        if dbg: a(f"s_waitcnt lgkmcnt(0)\ns_mov_b32 m0, s93\ns_add_u32 s93, s93, 1\nv_writelane_b32 {VDBG}, s94, m0\ns_memrealtime s[94:95]")
        a(f"s_cmp_eq_u32 {CNT}, 0\ns_cbranch_scc1 L_dyn{rho}\ns_add_u32 {CUR}, {CUR}, {TSTEP}\nL_go{rho}:")
        for i in range(4): issue(1 - rho, i, CUR)
        a(f"s_cmp_gt_u32 {CNT}, 1\ns_cbranch_scc1 L_nrq{rho}")
        request()
        a(f"s_mov_b32 {CNT}, 1\nL_nrq{rho}:\ns_sub_u32 {CNT}, {CNT}, 1")
        kpart(rho)
        a("s_waitcnt vmcnt(4)")
        for i in range(4, 8): issue(1 - rho, i, CUR)
        if not ckearly: pv(rho, 0); pv(rho, 1)
        a(f"s_cmp_lg_u32 {CNT}, 0\ns_cbranch_scc1 L_nck{rho}\ns_cmp_eq_u32 {QS}, {SUB}\ns_cbranch_scc1 L_nck{rho}\ns_waitcnt lgkmcnt(0)\ns_cmp_lt_u32 {TKT}, {1024-TB}\ns_cbranch_scc1 L_nck{rho}\ns_mov_b32 {ATT}, 0")
        request()
        a(f"L_nck{rho}:")
        if ckearly: pv(rho, 0); pv(rho, 1)
    a("s_branch L_loop0")
    for rho in (0, 1):
        a(f"L_dyn{rho}:\ns_waitcnt lgkmcnt(0)\ns_add_u32 {T0}, {TKT}, {TB}\ns_cmp_ge_u32 {T0}, {1024-THR}\ns_cbranch_scc1 L_trg{rho}\nL_adr{rho}:")
        if THH: a(f"s_cmp_ge_u32 {T0}, {1024-THH}\ns_cselect_b32 {ATT}, 0, {ATT}")
        a(f"s_and_b32 {T1}, {T0}, 1\ns_lshr_b32 {T0}, {T0}, 1\ns_lshl_b32 {T1}, {T1}, 9\ns_add_u32 {T0}, {T0}, {T1}\ns_lshl_b32 {T0}, {T0}, 12\ns_lshl_b32 {T1}, {QS}, 22\ns_add_u32 {T0}, {T0}, {T1}\ns_add_u32 {CUR}, {HB}, {T0}\ns_branch L_go{rho}")
        a(f"L_trg{rho}:\nds_write_b32 v18, v18")
        if THR2: a(f"s_cmp_lt_u32 {T0}, {1024-THR2}\ns_cbranch_scc1 L_tr2{rho}\nds_write_b32 v18, v18 offset:8\nL_tr2{rho}:")
        a(f"s_waitcnt lgkmcnt(0)\ns_cmp_lt_u32 {T0}, 1024\ns_cbranch_scc1 L_adr{rho}")
        stamp(4)
        tail_prep()
        kpart(rho, last=True)
        a("s_mov_b32 exec_lo, 0x000f000f\ns_mov_b32 exec_hi, 0x000f000f")
        a(f"ds_write2_b32 {vLM}, {vML}, v19 offset0:0 offset1:1\ns_mov_b64 exec, -1")
        a("s_waitcnt vmcnt(2)"); pv(rho, 0)
        a("s_waitcnt vmcnt(0)"); pv(rho, 1)
        if rho == 0: a("s_branch L_fin")
    a("L_fin:\ns_mov_b32 exec_lo, 0x000f000f\ns_mov_b32 exec_hi, 0x000f000f")
    for e in range(8): a(f"ds_write_b128 {vLW}, v[{vOc+4*e}:{vOc+4*e+3}] offset:{OB+64*e}")
    a("s_mov_b64 exec, -1")
    wo_issue()
    a("s_branch L_tail")
    a("L_rescale:")
    t = vT[0]; u_, w_ = vT[1], vT[2]
    a(f"v_max_f32 {u_}, {t}, {vM}\nv_max_f32_dpp {u_}, {u_}, {u_} row_ror:4 {FULL}\nv_max_f32_dpp {u_}, {u_}, {u_} row_ror:8 {FULL}")
    for sw in ("16", "32"):
        a(f"v_mov_b32 {w_}, {u_}\nv_permlane{sw}_swap_b32 {w_}, {u_}\nv_max_f32 {u_}, {u_}, {w_}")
    a(f"v_mov_b32 {vM}, {u_}\nv_mul_f32 {u_}, {LOG2E}, {u_}\nv_sub_f32 {w_}, {vML}, {u_}\nv_exp_f32 {w_}, {w_}\nv_mov_b32 {vML}, {u_}\nv_mul_f32 {vL}, {vL}, {w_}")
    for r in range(0, 32, 2): a(f"v_pk_mul_f32 v[{vOc+r}:{vOc+r+1}], v[{vOc+r}:{vOc+r+1}], v[14:15] op_sel_hi:[1,0]")
    a(f"s_setpc_b64 {RET}")

    a("L_svc2:")
    stamp(5)
    tail_prep()
    a(f"v_mul_u32_u24 v6, {8*3584}, {vr}\nv_lshl_add_u32 v6, {vc}, 4, v6\ns_mul_i32 s28, {X_}, {64*3584}\ns_lshl_b32 {T1}, {A_}, 7\ns_add_u32 s28, s28, {T1}")
    a(f"s_lshl_b32 {T1}, {X_}, 7\nv_lshl_add_u32 v7, {vr}, 4, {T1}\nds_read_b128 v[24:27], v7 offset:{XN}\nv_lshlrev_b32 v23, 4, v22\nv_lshlrev_b32 v7, 2, v0")
    a(f"s_lshl_b32 s29, {A_}, 13\ns_add_u32 s29, s29, {GP1}\ns_lshl_b32 {T1}, {X_}, 10\ns_add_u32 s30, s29, {T1}")
    a(f"s_lshr_b32 {T1}, {X_}, 2\ns_lshl_b32 {T2}, {T1}, 9\ns_add_u32 s29, s29, {T2}\ns_lshl_b32 {T2}, {A_}, 1\ns_add_u32 {T2}, {T2}, {T1}")
    a(f"s_and_b32 {T1}, {X_}, 3\ns_lshl_b32 s31, {T2}, 15\ns_lshl_b32 {T3}, {T1}, 8\ns_add_u32 s31, s31, {T3}\ns_lshl_b32 s61, {T1}, 16\ns_lshl_b32 {T2}, {T2}, 7\ns_add_u32 s61, s61, {T2}\ns_add_u32 s61, s61, {GA}")
    W2R, W2P = 160, 192
    a(f"s_cmp_ge_u32 {A_}, 28\ns_cbranch_scc1 L_noglu1")
    def g1_issue(k):
        b = WB + 16 * k
        if k: a(f"s_add_u32 s28, s28, 7168")
        a(f"buffer_load_dwordx4 v[{b}:{b+3}], v6, {s1}, s28 offen nt\nbuffer_load_dwordx4 v[{b+4}:{b+7}], v6, {s1}, s28 offen offset:3584 nt")
        a(f"buffer_load_dwordx4 v[{b+8}:{b+11}], v6, {s3_}, s28 offen nt\nbuffer_load_dwordx4 v[{b+12}:{b+15}], v6, {s3_}, s28 offen offset:3584 nt")
    for k in range(gth): g1_issue(k)
    for k in range(4):
        b = WB + 16 * k
        a(f"s_waitcnt vmcnt({4*(min(k+gth,4)-k-1)}) lgkmcnt(0)")
        if k + gth < 4: g1_issue(k + gth)
        pairdot(b, b + 4, f"v{24+k}", ACC, k == 0); pairdot(b + 8, b + 12, f"v{24+k}", ACC + 8, k == 0)
    redscat8(ACC, "v56"); redscat8(ACC + 8, "v57")
    a("L_noglu1:")
    if pre and prewhen == 1: pretouch()
    stamp(6)
    wait_lds("L_wtrg", TRG, tsleep, SPIN * 8)
    stamp(7)
    if pre and prewhen == 2: pretouch()
    a(f"s_cmp_ge_u32 {A_}, 28\ns_cbranch_scc1 L_noglu2")
    a(f"buffer_store_dwordx4 v[56:59], v23, {sW}, s30 offen sc1\ns_add_u32 s30, s29, 4096\ns_mov_b32 {SPN}, {SPIN}")
    def w2_loads():
        for i in range(32):
            if i and i % 4 == 0: a(f"s_add_u32 s31, s31, 4096")
            a(f"buffer_load_dword v{W2R+i}, v7, {s2_}, s31 offen offset:{1024*(i%4)} nt")
    def w2_perm():
        for k in range(16): a(f"v_perm_b32 v{W2P+2*k}, v{W2R+2*k+1}, v{W2R+2*k}, {SELL}\nv_perm_b32 v{W2P+2*k+1}, v{W2R+2*k+1}, v{W2R+2*k}, {SELH}")
    def w2_dot():
        for k in range(16):
            for c in range(2): a(f"v_dot2c_f32_bf16_dpp v{96+2*(k&1)+c}, v{88+(k>>3)}, v{W2P+2*k+c} row_newbcast:{2*(k&7)} {FULL}")
        a(f"v_add_f32 v100, v96, v98\nv_add_f32 v101, v97, v99")
    if not w2late: w2_loads()
    if THR2:
        wait_lds("L_wtr2", TR2, 1, SPIN * 8)
        a(f"s_mov_b32 {SPN}, {SPIN}")
    a(f"v_mov_b32 v96, 0\nv_mov_b32 v97, 0\nv_mov_b32 v98, 0\nv_mov_b32 v99, 0\nv_mov_b32 v102, {vN0}\nv_mov_b32 v103, {vN1}\nL_pollh:")
    for i in range(4): a(f"buffer_load_dwordx4 v[{72+4*i}:{75+4*i}], {vG1}, {sW}, {('s29','s30')[i>>1]} offen offset:{2048*(i&1)} sc1")
    a(f"s_sub_u32 {SPN}, {SPN}, 1\ns_cbranch_scc1 L_pollh_done\ns_waitcnt vmcnt(0)")
    tagcheck([74, 78, 82, 86], "v88")
    a("v_cmp_ne_u32 vcc, 0, v88\ns_cbranch_vccnz L_pollh\nL_pollh_done:\ns_waitcnt vmcnt(0)")
    if not w2late: w2_perm()
    a("v_add_f32 v88, v72, v76\nv_add_f32 v89, v73, v77\nv_add_f32 v90, v80, v84\nv_add_f32 v91, v81, v85")
    a("v_add_f32 v88, v88, v90\nv_add_f32 v89, v89, v91\nv_permlane32_swap_b32 v88, v89\nv_add_f32 v89, v88, v89\nv_mov_b32 v88, v89\nv_permlane32_swap_b32 v88, v89")
    bfr("v88"); bfr("v89"); silu_bf("v88", "v90")
    a(f"v_mul_f32 v88, v88, v89\nv_mov_b32_dpp v89, v88 quad_perm:[1,1,3,3] {FULL}\nv_cvt_pk_bf16_f32 v89, v88, v89\nv_mov_b32 v88, v89\nv_permlane16_swap_b32 v88, v89")
    if not w2late: w2_dot()
    a("L_noglu2:")
    if not w2late: wo_issue()
    stamp(3)
    a("L_tail:")
    a(f"s_waitcnt lgkmcnt(0)\nv_mov_b32 v39, {vN0}\ns_barrier")
    stamp(8)
    for s_ in range(3): a(f"ds_read_b64 v[{20+2*s_}:{21+2*s_}], {vA2} offset:{MLB+32*s_}")
    for s_ in range(3): a(f"ds_read_b128 v[{72+4*s_}:{75+4*s_}], {vA1} offset:{OB+OBS*s_}")
    a("s_waitcnt lgkmcnt(3)\nv_max3_f32 v32, v20, v22, v24")
    for s_ in range(3): a(f"v_sub_f32 v{20+2*s_}, v{20+2*s_}, v32")
    for s_ in range(3): a(f"v_exp_f32 v{20+2*s_}, v{20+2*s_}")
    a("v_mul_f32 v33, v21, v20\nv_fmac_f32 v33, v23, v22\nv_fmac_f32 v33, v25, v24\ns_mov_b32 exec_hi, 0")
    a("s_waitcnt lgkmcnt(1)")
    for i in range(4): a(f"v_mul_f32 v{72+i}, v{72+i}, v20")
    for i in range(4): a(f"v_fmac_f32 v{72+i}, v{76+i}, v22")
    a("v_cndmask_b32 v38, v32, v33, s[82:83]\ns_waitcnt lgkmcnt(0)")
    for i in range(4): a(f"v_fmac_f32 v{72+i}, v{80+i}, v24")
    a("v_cvt_pk_bf16_f32 v36, v72, v73\nv_cvt_pk_bf16_f32 v37, v74, v75")
    a(f"buffer_store_dwordx4 v[36:39], {vA3}, {sW}, s76 offen sc1\ns_mov_b64 exec, -1")
    stamp(9)
    def h1_load(i): a(f"buffer_load_dwordx4 v[{20+4*i}:{23+4*i}], {vH1}, {sW}, s78 offen offset:{2048*i} sc1")
    PW = 52
    def wo_perm():
        for i in range(8): a(f"v_permlane32_swap_b32 v{vW+2*i}, v{vW+2*i+1}")
        for i in range(8): a(f"v_perm_b32 v{PW+2*i}, v{vW+2*i+1}, v{vW+2*i}, {SELL}\nv_perm_b32 v{PW+2*i+1}, v{vW+2*i+1}, v{vW+2*i}, {SELH}")
    a(f"s_mov_b32 {SPN}, {SPIN}\nv_mov_b32 v44, 0\nv_mov_b32 v45, 0\nv_mov_b32 v46, 0\nv_mov_b32 v47, 0\nv_mov_b32 v70, {vN0}\nv_mov_b32 v71, {vN1}")
    if w2late:
        a(f"s_cmp_lg_u32 s3, 0\ns_cbranch_scc1 L_wop")
        wo_issue()
        a(f"s_cmp_ge_u32 {A_}, 28\ns_cbranch_scc1 L_wop0")
        w2_loads()
        a("s_waitcnt vmcnt(32)"); wo_perm()
        for i in range(2): h1_load(i)
        a("s_waitcnt vmcnt(2)"); w2_perm(); w2_dot()
        a(f"buffer_store_dwordx4 v[100:103], {vA6}, {sW}, s61 offen sc1\ns_waitcnt vmcnt(1)\ns_branch L_poll1c")
        a("L_wop0:\ns_waitcnt vmcnt(0)\nL_wop:")
    a("s_waitcnt vmcnt(1)")
    wo_perm()
    if h1s > 1: a(f"s_sleep {h1s}")
    for i in range(2): h1_load(i)
    if not w2late:
        a(f"s_cmp_lg_u32 s3, 0\ns_cbranch_scc1 L_poll1\ns_cmp_ge_u32 {A_}, 28\ns_cbranch_scc1 L_poll1")
        a(f"buffer_store_dwordx4 v[100:103], {vA6}, {sW}, s61 offen sc1\ns_waitcnt vmcnt(1)\ns_branch L_poll1c")
    def repoll(name, loadf, n):
        a(f"s_or_b64 s[66:67], {CM[0]}, {CM[1]}")
        for i in range(2, n): a(f"s_or_b64 s[66:67], s[66:67], {CM[i]}")
        a(f"s_cbranch_scc0 {name}_done")
        a(f"s_sub_u32 {SPN}, {SPN}, 1\ns_cbranch_scc1 {name}_done")
        for i in range(n):
            a(f"s_cmp_eq_u64 {CM[i]}, 0\ns_cbranch_scc1 {name}_s{i}")
            loadf(i)
            a(f"{name}_s{i}:")
        a(f"s_branch {name}\n{name}_done:")
    a("L_poll1:\ns_waitcnt vmcnt(0)\nL_poll1c:")
    for i in range(2): a(f"v_cmp_ne_u32 {CM[i]}, v{23+4*i}, {vN0}")
    for i in range(2): a(f"v_mov_b32_dpp v{36+i}, v{22+4*i} quad_perm:[0,0,2,2] {FULL}")
    a("v_lshlrev_b32 v28, 16, v20\nv_max_f32 v41, v36, v37\nv_and_b32 v29, 0xffff0000, v20\nv_lshlrev_b32 v30, 16, v21")
    repoll("L_poll1", h1_load, 2)
    stamp(10)
    a(f"v_max_f32_dpp v41, v41, v41 row_ror:4 {FULL}\nv_and_b32 v31, 0xffff0000, v21\nv_lshlrev_b32 v32, 16, v24\nv_max_f32_dpp v41, v41, v41 row_ror:8 {FULL}")
    a("v_mov_b32 v42, v41\nv_and_b32 v33, 0xffff0000, v24\nv_lshlrev_b32 v34, 16, v25\nv_permlane16_swap_b32 v42, v41\nv_max_f32 v41, v41, v42")
    a("v_mov_b32 v42, v41\nv_and_b32 v35, 0xffff0000, v25\ns_nop 0\nv_permlane32_swap_b32 v42, v41\nv_max_f32 v41, v41, v42")
    a("v_sub_f32 v36, v36, v41\nv_sub_f32 v37, v37, v41\nv_exp_f32 v36, v36\nv_exp_f32 v37, v37")
    for r in (28, 29, 30, 31, 22): a(f"v_mul_f32 v{r}, v{r}, v36")
    for r in (28, 29, 30, 31, 22): a(f"v_fmac_f32 v{r}, v{r+4}, v37")
    a("v_permlane32_swap_b32 v28, v29\nv_mov_b32 v26, v22\nv_permlane32_swap_b32 v30, v31\nv_add_f32 v28, v28, v29\nv_permlane32_swap_b32 v26, v22\nv_add_f32 v30, v30, v31\nv_add_f32 v22, v22, v26")
    a("v_mov_b32 v26, v22\nv_permlane16_swap_b32 v28, v30\nv_add_f32 v28, v28, v30\nv_permlane16_swap_b32 v26, v22\nv_add_f32 v22, v22, v26")
    for n in (4, 8): a(f"v_add_f32_dpp v28, v28, v28 row_ror:{n} {FULL}\nv_add_f32_dpp v22, v22, v22 row_ror:{n} {FULL}")
    a(f"v_rcp_f32_dpp v22, v22 quad_perm:[1,1,3,3] {FULL}\nv_mul_f32 v28, v28, v22\nv_mov_b32 v29, v28\nv_permlane32_swap_b32 v29, v28\nv_cvt_pk_bf16_f32 v28, v29, v28\nv_mov_b32 v29, v28\nv_permlane16_swap_b32 v29, v28")
    for k in range(8):
        for c in range(2): a(f"v_dot2c_f32_bf16_dpp v{44+2*(k&1)+c}, v{29-(k&1)}, v{PW+2*k+c} row_newbcast:{k>>1} {FULL}")
    a(f"v_add_f32 v44, v44, v46\nv_add_f32 v45, v45, v47\nds_write_b64 {vA5}, v[44:45] offset:{SX}\ns_waitcnt lgkmcnt(0)\ns_barrier")
    a("s_cmp_lg_u32 s3, 0\ns_cbranch_scc1 L_notpub")
    for w in range(4): a(f"ds_read_b64 v[{20+2*w}:{21+2*w}], {vL8} offset:{SX+512*w}")
    a("s_waitcnt lgkmcnt(2)\nv_add_f32 v20, v20, v22\nv_add_f32 v21, v21, v23\ns_waitcnt lgkmcnt(0)\nv_add_f32 v24, v24, v26\nv_add_f32 v25, v25, v27\nv_add_f32 v68, v20, v24\nv_add_f32 v69, v21, v25")
    a(f"buffer_store_dwordx4 v[68:71], {vA6}, {sW}, s80 offen sc1")
    stamp(11)
    a("s_branch L_done\nL_notpub:")
    a(f"s_cmp_lg_u32 s3, 1\ns_cbranch_scc1 L_done\ns_cmp_eq_u32 {FIN}, -1\ns_cbranch_scc1 L_done")
    def red2(c, tmp):
        a(f"v_permlane32_swap_b32 v{c}, v{c+1}\nv_add_f32 v{c}, v{c}, v{c+1}\nv_mov_b32 {tmp}, v{c}\nv_permlane16_swap_b32 {tmp}, v{c}\nv_add_f32 v{c}, v{c}, {tmp}")
        a(f"v_add_f32_dpp v{c}, v{c}, v{c} row_ror:8 {FULL}")
    def g_load(i): a(f"buffer_load_dwordx4 v[{72+4*i}:{75+4*i}], {vA4}, {sW}, {('s87','s79')[i>>2]} offen offset:{1024*(i&3)} sc1")
    def h2_load(i): a(f"buffer_load_dwordx4 v[{20+4*i}:{23+4*i}], {vA4}, {sW}, {('s81','s75')[i>>2]} offen offset:{1024*(i&3)} sc1")
    def tree(base, n, d0, d1):
        for e, d in ((0, d0), (1, d1)):
            a(f"v_add_f32 {d}, v{base+e}, v{base+4+e}\nv_add_f32 v104, v{base+8+e}, v{base+12+e}\nv_add_f32 v105, v{base+16+e}, v{base+20+e}\nv_add_f32 {d}, {d}, v104\nv_add_f32 v105, v105, v{base+24+e}")
            if n == 8: a(f"v_add_f32 {d}, {d}, v{base+28+e}")
            a(f"v_add_f32 {d}, {d}, v105")
    a(f"s_mov_b32 {SPN}, {SPIN}\ns_add_u32 s79, s87, 4096\ns_add_u32 s75, s81, 4096\nbuffer_load_ushort {vX}, {vXo}, {sX}, s88 offen")
    for i in range(7): g_load(i)
    a("L_pollg:\ns_waitcnt vmcnt(0)")
    for i in range(7): a(f"v_cmp_ne_u64 {CM[i]}, v[{74+4*i}:{75+4*i}], v[138:139]")
    repoll("L_pollg", g_load, 7)
    a(f"s_cmp_lg_u32 {FIN}, 0\ns_cbranch_scc1 L_nonon\ns_mov_b32 {T0}, {NON}\ns_mov_b64 exec, 1\nbuffer_store_dwordx2 v[138:139], {vZ}, {sW}, {T0} offen sc1\ns_mov_b64 exec, -1\nL_nonon:")
    tree(72, 7, "v106", "v107")
    red2(106, "v104")
    bfr("v106"); silu_bf("v106", "v107"); a(f"v_lshlrev_b32 {vX}, 16, {vX}")
    for i in range(8): h2_load(i)
    stamp(15)
    a(f"s_mov_b32 {SPN}, {SPIN}\nL_poll2:\ns_waitcnt vmcnt(0)")
    for i in range(8): a(f"v_cmp_ne_u64 {CM[i]}, v[{22+4*i}:{23+4*i}], v[138:139]")
    tree(20, 8, "v108", "v109")
    repoll("L_poll2", h2_load, 8)
    stamp(12)
    red2(108, "v104")
    bfr("v108"); a("v_mul_f32 v108, v108, v106"); bfr("v108"); a(f"v_add_f32 v108, v108, {vX}\nv_cvt_pk_bf16_f32 v108, v108, v108")
    a(f"s_mov_b32 exec_lo, 0xff\ns_mov_b32 exec_hi, 0xff\nbuffer_store_short v108, {vXo}, {sY}, s88 offen {outsc}\ns_mov_b64 exec, -1")
    a("L_done:")
    if dbg:
        stamp(13)
        a("s_getreg_b32 s98, hwreg(HW_REG_XCC_ID)")
        a(f"v_writelane_b32 {VDBG}, s98, 14")
        a(f"s_lshl_b32 {T0}, s2, 2\ns_add_u32 {T0}, {T0}, s3\ns_lshl_b32 {T0}, {T0}, 8\ns_add_u32 {T0}, {T0}, {DBG}\ns_sub_u32 s16, s16, {wsb}\ns_subb_u32 s17, s17, 0\nv_lshlrev_b32 v12, 2, v0\nbuffer_store_dword {VDBG}, v12, {sW}, {T0} offen\ns_add_u32 {T0}, {T0}, 0x40000\nbuffer_store_dword v246, v12, {sW}, {T0} offen")
    a("L_end:\ns_endpgm")
    a.pad()
    a('.section .rodata,"a"\n.p2align 6')
    a(f".amdhsa_kernel {KN}_kernel")
    a("""  .amdhsa_next_free_vgpr 512
  .amdhsa_next_free_sgpr 102
  .amdhsa_accum_offset 256
  .amdhsa_group_segment_fixed_size 0
  .amdhsa_kernarg_size 96
  .amdhsa_user_sgpr_count 2
  .amdhsa_user_sgpr_kernarg_segment_ptr 1
  .amdhsa_system_sgpr_workgroup_id_x 1
  .amdhsa_float_denorm_mode_32 3
.end_amdhsa_kernel""")
    return a.text()
if __name__ == "__main__":
    kw = eval("dict(%s)" % (sys.argv[2] if len(sys.argv) > 2 else ""))
    open(sys.argv[1], "w").write(gen(**kw))
```

```python
import sys
from asmlib import *
KN = "recurrent_scan__gqa_block_cached__glu_gated_swiglu__decode"
QP, TK, NON, GP1, GA, H1, H2, DBG = 0x0, 0x20000, 0x28000, 0x30000, 0x70000, 0xC0000, 0x140000, 0x400000
XN, QL, NL, TRG, QT, TR2, MLB, OB = 0, 1024, 2048, 2056, 2060, 2064, 2080, 2176
SX = 0
OBS = 2112
LDS_BYTES = OB + 3 * OBS
SPIN = 1 << 20
FULL = "row_mask:0xf bank_mask:0xf"

def gen(P=7, E=4, NTOT=37, THR=26, MQ=7, dbg=False, wsb=0, tsleep=4, gearly=False, al=0, h2o=2, h2s=0, h1s=1, THH=36, ckearly=True, nearly=True, outsc='sc1', gth=4, noq=0, THR2=0, w2late=False, touch=0, pre=7, prewhen=2, cpf=True):
    a = Asm()
    hdr = open("cdna_kernels/" + KN + ".s.ref").read().split("; Override launch")[0]
    a.L += hdr.rstrip().split("\n")
    a(f"; @launch grid=(256,1,1) block=(256,1,1) lds={LDS_BYTES}")
    a("""; ---------------------------------------------------------------------------------------------------------
; ---------------------------------------------------------------------------------------------------------""")
    a('.amdgcn_target "amdgcn-amd-amdhsa--gfx950"\n.text')
    if al: a(f".p2align {al}")
    a(f".globl {KN}_kernel\n.p2align 8\n.type {KN}_kernel,@function\n{KN}_kernel:")
    sK, sV, sW, sO = "s[8:11]", "s[12:15]", "s[16:19]", "s[20:23]"
    sQ, sX, sY, s1, s3_, s2_ = "s[24:27]", "s[32:35]", "s[36:39]", "s[40:43]", "s[44:47]", "s[48:51]"
    X_, A_, H_, SUB, J_, FIN = "s52", "s53", "s54", "s55", "s56", "s59"
    CUR, CNT, ATT, DD, HB, QS, TKT = "s30", "s60", "s61", "s31", "s28", "s29", "s86"
    CTR, RET = "s[62:63]", "s[64:65]"
    T0, T1, T2, T3 = "s66", "s67", "s68", "s69"
    SELL, SELH, SCALE, LOG2E, SPN, JR = "s70", "s71", "s72", "s73", "s74", "s77"
    CM = ["s[90:91]", "s[92:93]", "s[94:95]", "s[84:85]", "s[4:5]", "s[6:7]", "s[26:27]", "s[24:25]"]
    VDBG = "v3"
    def stamp(k):
        if dbg: a(f"s_memrealtime s[98:99]\ns_waitcnt lgkmcnt(0)\nv_writelane_b32 {VDBG}, s98, {k}")
    def srd(base, n): a(f"s_mov_b32 s{base+2}, {hex(n)}\ns_mov_b32 s{base+3}, 0x20000")
    def bfr(r): a(f"v_cvt_pk_bf16_f32 {r}, {r}, {r}\nv_lshlrev_b32 {r}, 16, {r}")
    def silu_bf(r, tmp):
        a(f"v_mul_f32 {tmp}, {LOG2E}, {r}\nv_exp_f32 {tmp}, -{tmp}\nv_add_f32 {tmp}, 1.0, {tmp}\nv_rcp_f32 {tmp}, {tmp}\nv_mul_f32 {r}, {r}, {tmp}"); bfr(r)
    a(f"s_lshr_b32 {A_}, s2, 3\ns_cmp_ge_u32 {A_}, 32\ns_cbranch_scc1 L_end")
    for base, off in ((8, 8), (12, 16), (24, 24), (32, 0), (16, 88)): a(f"s_load_dwordx2 s[{base}:{base+1}], s[0:1], {off}")
    a("v_readfirstlane_b32 s3, v0\nv_and_b32 v0, 63, v0")
    if dbg: a("s_memrealtime s[96:97]")
    a(f"s_and_b32 {X_}, s2, 7\ns_and_b32 {H_}, {A_}, 7\ns_lshr_b32 {SUB}, {A_}, 3\ns_lshr_b32 s3, s3, 6\ns_cbranch_scc1 L_stream")
    def late_setup():
        for base, off in ((20, 32), (36, 72), (40, 48), (44, 56), (48, 64)): a(f"s_load_dwordx2 s[{base}:{base+1}], s[0:1], {off}")
        for base, n in ((20, 0x400000), (36, 1024), (40, 512*3584), (44, 512*3584), (48, 1792*1024)): srd(base, n)
        a(f"s_mov_b32 {SELL}, 0x05040100\ns_mov_b32 {SELH}, 0x07060302\ns_mov_b32 {SCALE}, {fhex(128**-0.5)}\ns_mov_b32 {LOG2E}, {fhex(1.4426950408889634)}")
        a(f"s_lshl_b32 {J_}, {SUB}, 3\ns_add_u32 {J_}, {J_}, {X_}\ns_lshl_b32 {JR}, {X_}, 2\ns_add_u32 {JR}, {JR}, {SUB}")
        a(f"s_sub_u32 {T0}, {X_}, {A_}\ns_and_b32 {T0}, {T0}, 7\ns_cmp_eq_u32 {T0}, 4\ns_cselect_b32 {FIN}, {A_}, -1")
    vL16, vr, vc, WB, ACC = "v2", "v4", "v5", 64, 40
    if cpf:
        a(f"s_getpc_b64 s[4:5]\nL_pc:\ns_lshl_b32 s6, {A_}, 7\nv_lshl_add_u32 v2, v0, 12, s6\nv_cmp_gt_u32 vcc, L_end-L_pc, v2\ns_setprio 3\ns_mov_b64 exec, vcc\nglobal_load_dword v247, v2, s[4:5]\ns_mov_b64 exec, -1")
    else: a('s_setprio 3')
    a(f"v_lshlrev_b32 {vL16}, 4, v0\nv_lshrrev_b32 {vr}, 3, v0\nv_and_b32 {vc}, 7, v0\nv_lshlrev_b32 v6, 17, {vr}\nv_lshl_add_u32 v6, {vc}, 4, v6\nv_mov_b32 v21, 0\nv_mov_b32 v20, {TRG}")
    srd(24, 0x400000); srd(32, 1024); srd(16, 0x20000000 - wsb)
    a(f"s_lshl_b32 {T0}, {SUB}, 20\ns_lshl_b32 {T2}, {H_}, 10\ns_add_u32 {T0}, {T0}, {T2}\ns_lshl_b32 {T2}, {X_}, 7\ns_add_u32 {T0}, {T0}, {T2}")
    a("s_waitcnt lgkmcnt(0)")
    a(f"buffer_load_dwordx4 v[8:11], {vL16}, {sX}, 0 offen\nds_write2_b32 v20, v21, v21 offset0:0 offset1:1\nds_write_b32 v20, v21 offset:8")
    for i in range(16):
        if i: a(f"s_add_u32 {T0}, {T0}, 8192")
        a(f"buffer_load_dwordx4 v[{WB+4*i}:{WB+4*i+3}], v6, {sQ}, {T0} offen nt")
    a("s_waitcnt lgkmcnt(0)\ns_barrier\ns_branch L_svc1")

    vKO, vVO, vQ = "v1", "v2", 4
    vM, vML, vL, vS, vT = "v8", "v9", "v10", "v11", ["v12", "v13", "v14", "v15"]
    vB, vD, vA, vOc, vV0 = 16, 20, 36, 52, 84
    kreg = lambda slot, i: f"a[{16*slot+4*i}:{16*slot+4*i+3}]"
    vreg = lambda slot, i: vV0 + 16 * slot + 4 * i
    a("L_stream:")
    a(f"s_lshl_b32 {HB}, {H_}, 24\ns_lshl_b32 {T0}, {X_}, 9\ns_mul_i32 {T1}, {SUB}, 3\ns_add_u32 {T0}, {T0}, {T1}\ns_add_u32 {T0}, {T0}, s3\ns_sub_u32 {T0}, {T0}, 1\ns_lshl_b32 {T0}, {T0}, 12\ns_add_u32 {CUR}, {HB}, {T0}")
    a(f"v_lshrrev_b32 v12, 4, v0\nv_lshlrev_b32 v12, 6, v12\nv_bfe_u32 v13, v0, 2, 2\nv_and_b32 v14, 3, v0\nv_lshl_add_u32 v12, v13, 8, v12\nv_lshl_add_u32 {vKO}, v14, 4, v12\nv_lshlrev_b32 {vVO}, 4, v0")
    srd(8, 0x8000000); srd(12, 0x8000000)
    TSTEP = 12 * 4096
    S0 = P + E; NS = S0 + 1; NSTAT = NTOT - NS; TB = 24 * NTOT
    assert NSTAT >= 1 and E <= P - 2
    perm = [None] * P
    perm[S0 % P] = 0; perm[(S0 + 1) % P] = 1
    fr = iter(range(2, P))
    perm = [p if p is not None else next(fr) for p in perm]
    slot_of = lambda t: perm[t % P]
    def issue(slot, i, soff):
        if i < 4: a(f"buffer_load_dwordx4 {kreg(slot, i)}, {vKO}, {sK}, {soff} offen offset:{i*1024} nt")
        else:
            r = vreg(slot, i - 4); a(f"buffer_load_dwordx4 v[{r}:{r+3}], {vVO}, {sV}, {soff} offen offset:{(i-4)*1024} nt")
    st = {"m": 0}
    def issue_group():
        m = st["m"]; t, hf = divmod(m, 2)
        if hf == 0 and t > 0: a(f"s_add_u32 {CUR}, {CUR}, {TSTEP}")
        if m >= 2: a("s_waitcnt vmcnt(4)")
        for i in range(4): issue(slot_of(t), 4 * hf + i, CUR)
        if dbg and m >= 2: a(f"s_memrealtime s[98:99]\ns_waitcnt lgkmcnt(0)\nv_writelane_b32 v246, s98, {m}")
        st["m"] = m + 1
    a("s_waitcnt lgkmcnt(0)")
    if dbg: a("s_memrealtime s[94:95]")
    a("s_barrier")
    if dbg: a("s_memrealtime s[92:93]")
    for m in range(2 * P):
        issue_group()
        if m == MQ: a("ds_write_b32 v18, v18 offset:4")
        if m == 1:
            a(f"s_add_u32 s16, s16, {wsb}\ns_addc_u32 s17, s17, 0"); srd(16, 0x20000000 - wsb); srd(32, 1024)
            late_setup()
            a(f"v_mov_b32 {vM}, 0xff7fffff\nv_mov_b32 {vML}, 0xff7fffff\nv_mov_b32 {vL}, 0\nv_mov_b32 {vS}, 0\nv_mov_b32 v18, {TRG}")
            for r in range(32): a(f"v_mov_b32 v{vOc+r}, 0")
            a(f"s_mov_b32 {CNT}, {NSTAT}\ns_mov_b32 {ATT}, 1\ns_add_u32 {DD}, s3, {X_}\ns_lshl_b32 {T0}, {H_}, 10\ns_add_u32 {T0}, {T0}, {TK}\ns_add_u32 s62, s16, {T0}\ns_addc_u32 s63, s17, 0\ns_mov_b32 {QS}, {SUB}")
            if dbg: a(f"v_mov_b32 {VDBG}, 0\nv_mov_b32 v246, 0\ns_waitcnt lgkmcnt(0)\nv_writelane_b32 {VDBG}, s96, 0\nv_writelane_b32 {VDBG}, s94, 5\nv_writelane_b32 {VDBG}, s92, 6")
    stamp(1)
    a("s_branch L_backlog")

    a("L_svc1:")
    a(f"s_add_u32 s16, s16, {wsb}\ns_addc_u32 s17, s17, 0\ns_mov_b32 {T2}, {NON}\nbuffer_load_dwordx2 v[58:59], v21, {sW}, {T2} offen sc1")
    a(f"s_lshl_b32 {T1}, {A_}, 10\ns_add_u32 {T1}, {T1}, {TK}\ns_lshl_b32 {T2}, {X_}, 7\ns_add_u32 {T1}, {T1}, {T2}")
    NST = 1
    if dbg: a(f"v_mov_b32 {VDBG}, 0\nv_mov_b32 v246, 0\nv_writelane_b32 {VDBG}, s96, 0")
    late_setup_pos = len(a.L)
    def allreduce(r, tmp, op="v_add_f32"):
        for n in (8, 4, 2, 1): a(f"{op}_dpp {r}, {r}, {r} row_ror:{n} {FULL}")
        for sw in ("16", "32"): a(f"v_mov_b32 {tmp}, {r}\nv_permlane{sw}_swap_b32 {tmp}, {r}\n{op} {r}, {r}, {tmp}")
    a(f"s_cmp_lg_u32 {X_}, 0\ns_cbranch_scc1 L_noini\ns_mov_b64 exec, 1\nbuffer_store_dword v21, v21, {sW}, {T1} offen sc1\ns_mov_b64 exec, -1\ns_waitcnt vmcnt({16+NST+1})\nL_noini:")
    late_setup()
    a(f"v_bfe_u32 v22, v0, 5, 1\nv_bfe_u32 v23, v0, 4, 1\nv_lshlrev_b32 v22, 2, v22\nv_lshl_add_u32 v22, v23, 1, v22\nv_bfe_u32 v23, v0, 3, 1\nv_add_u32 v22, v22, v23\nv_lshl_add_u32 v22, {vc}, 3, v22\nv_lshlrev_b32 v23, 3, v22")
    a(f"s_lshl_b32 {T0}, {SUB}, 8\nv_lshl_add_u32 v20, {vr}, 5, {T0}")
    a(f"s_cmp_eq_u32 {X_}, 0\ns_cbranch_scc1 L_xw\ns_waitcnt vmcnt({16+NST})\nL_xw:")
    for w in range(4): a(f"v_lshlrev_b32 v{24+2*w}, 16, v{8+w}\nv_and_b32 v{25+2*w}, 0xffff0000, v{8+w}")
    a("v_add_f32 v32, v24, v25\nv_add_f32 v33, v26, v27\nv_add_f32 v34, v28, v29\nv_add_f32 v35, v30, v31\nv_add_f32 v32, v32, v33\nv_add_f32 v34, v34, v35\nv_add_f32 v32, v32, v34")
    allreduce("v32", "v33")
    a(f"v_mul_f32 v32, {fhex(1/512)}, v32")
    for i in range(8): a(f"v_sub_f32 v{40+i}, v{24+i}, v32")
    a("v_mul_f32 v34, v40, v40\nv_mul_f32 v35, v41, v41")
    for i in range(2, 8): a(f"v_fmac_f32 v{34+(i&1)}, v{40+i}, v{40+i}")
    a("v_add_f32 v34, v34, v35")
    allreduce("v34", "v33")
    a(f"v_mul_f32 v34, {fhex(1/512)}, v34")
    bfr("v32"); bfr("v34")
    a(f"v_add_f32 v34, {fhex(1e-5)}, v34"); bfr("v34")
    a("v_sqrt_f32 v34, v34"); bfr("v34"); a("v_rcp_f32 v34, v34")
    for i in range(8): a(f"v_sub_f32 v{40+i}, v{24+i}, v32")
    for w in range(4): a(f"v_cvt_pk_bf16_f32 v{48+w}, v{40+2*w}, v{41+2*w}")
    for w in range(4): a(f"v_lshlrev_b32 v{40+2*w}, 16, v{48+w}\nv_and_b32 v{41+2*w}, 0xffff0000, v{48+w}")
    for i in range(8): a(f"v_mul_f32 v{40+i}, v{40+i}, v34")
    for w in range(4): a(f"v_cvt_pk_bf16_f32 v{48+w}, v{40+2*w}, v{41+2*w}")
    a(f"ds_write_b128 {vL16}, v[48:51] offset:{XN}")
    a(f"s_waitcnt lgkmcnt(0)\nds_read_b128 v[24:27], v20 offset:{XN}\nds_read_b128 v[28:31], v20 offset:{XN+16}\ns_waitcnt lgkmcnt(0)")
    stamp(1)
    def pairdot(r0, r1, xp, acc, first, tmps=("v60", "v61", "v62", "v63")):
        for w in range(4):
            for hh, sel in ((0, SELL), (1, SELH)):
                tm = tmps[(2*w+hh) % len(tmps)]
                a(f"v_perm_b32 {tm}, v{r1+w}, v{r0+w}, {sel}")
                a(f"v_dot2_f32_bf16 v{acc+2*w+hh}, {tm}, {xp}, {'0' if first else 'v%d' % (acc+2*w+hh)}")
    for k in range(8):
        a(f"s_waitcnt vmcnt({16-2*k-2+NST})")
        pairdot(WB + 8*k, WB + 8*k + 4, f"v{24+k}", ACC, k == 0)
    def redscat8(acc, out):
        for e in range(4): a(f"v_permlane32_swap_b32 v{acc+e}, v{acc+e+4}")
        for e in range(4): a(f"v_add_f32 v{acc+e}, v{acc+e}, v{acc+e+4}")
        for e in range(2): a(f"v_permlane16_swap_b32 v{acc+e}, v{acc+e+2}")
        for e in range(2): a(f"v_add_f32 v{acc+e}, v{acc+e}, v{acc+e+2}")
        if out:
            a(f"v_add_f32_dpp {out}, v{acc}, v{acc} row_ror:8 row_mask:0xf bank_mask:0x3\nv_add_f32_dpp {out}, v{acc+1}, v{acc+1} row_ror:8 row_mask:0xf bank_mask:0xc")
    redscat8(ACC, None)
    a(f"s_lshl_b32 {T3}, {H_}, 14\ns_lshl_b32 {T2}, {J_}, 9\ns_add_u32 {T0}, {T3}, {T2}")
    a(f"v_add_f32_dpp v56, v{ACC}, v{ACC} row_ror:8 {FULL}\nv_add_f32_dpp v57, v{ACC+1}, v{ACC+1} row_ror:8 {FULL}")
    a(f"s_mov_b32 {T1}, 1664525\ns_waitcnt vmcnt(0)\nv_mul_lo_u32 v58, v58, {T1}\nv_add_u32 v58, 0x3c6ef35f, v58")
    a(f"s_mov_b32 exec_lo, 0x00ff00ff\ns_mov_b32 exec_hi, 0x00ff00ff\n{'s_nop 0' if noq&1 else f'buffer_store_dwordx4 v[56:59], v23, {sW}, {T0} offen sc1'}\ns_mov_b64 exec, -1")
    stamp(2)
    a(f"ds_write_b64 v21, v[58:59] offset:{NL}")
    if touch:
        a(f"s_waitcnt lgkmcnt(0)\ns_mov_b64 exec, 1\ns_lshl_b32 {T0}, {H_}, 19\nbuffer_load_dword v248, v21, {sO}, {T0} offen\nbuffer_load_dword v249, v21, {sY}, 0 offen\nbuffer_load_dword v250, v21, {s2_}, 0 offen")
        a(f"s_mov_b32 {T0}, {H1}\nbuffer_load_dword v251, v21, {sW}, {T0} offen\ns_mov_b32 {T0}, {H2}\nbuffer_load_dword v252, v21, {sW}, {T0} offen\ns_mov_b64 exec, -1")
    def pretouch():
        a("; prefetch (values unused) of the scratch lines this workgroup is about to write")
        a(f"v_lshlrev_b32 v248, 12, v0\ns_mov_b64 exec, 0xffff")
        if pre & 1: a(f"s_lshl_b32 {T0}, {H_}, 16\ns_lshl_b32 {T1}, {J_}, 7\ns_add_u32 {T0}, {T0}, {T1}\ns_add_u32 {T0}, {T0}, {H1}\nbuffer_load_dword v249, v248, {sW}, {T0} offen")
        if pre & 2: a(f"s_lshl_b32 {T0}, {SUB}, 16\ns_lshl_b32 {T1}, {H_}, 3\ns_add_u32 {T1}, {T1}, {X_}\ns_lshl_b32 {T1}, {T1}, 7\ns_add_u32 {T0}, {T0}, {T1}\ns_add_u32 {T0}, {T0}, {H2}\ns_mov_b64 exec, 0xff\nv_lshlrev_b32 v248, 13, v0\nbuffer_load_dword v250, v248, {sW}, {T0} offen")
        if pre & 4: a(f"s_and_b32 {T0}, {X_}, 3\ns_lshl_b32 {T0}, {T0}, 16\ns_lshr_b32 {T1}, {X_}, 2\ns_lshl_b32 {T2}, {A_}, 1\ns_add_u32 {T1}, {T1}, {T2}\ns_lshl_b32 {T1}, {T1}, 7\ns_add_u32 {T0}, {T0}, {T1}\ns_add_u32 {T0}, {T0}, {GA}\nbuffer_load_dword v251, v248, {sW}, {T0} offen")
        a("s_mov_b64 exec, -1")
    if pre and prewhen == 0: pretouch()
    def tagcheck(regs, acc):
        for n, r in enumerate(regs):
            a(f"v_xor_b32 {acc}, v{r}, v58" if n == 0 else f"v_bitop3_b32 {acc}, v{r}, v58, {acc} bitop3:0xbe")
            a(f"v_bitop3_b32 {acc}, v{r+1}, v59, {acc} bitop3:0xbe")
    def wait_lds(name, off, sleep, bound):
        a(f"s_mov_b32 {SPN}, {bound}\n{name}:\ns_sleep {sleep}\nds_read_b32 v33, v21 offset:{off}\ns_sub_u32 {SPN}, {SPN}, 1\ns_cbranch_scc1 {name}_d\ns_waitcnt lgkmcnt(0)\nv_cmp_eq_u32 vcc, 0, v33\ns_cbranch_vccnz {name}\n{name}_d:\ns_waitcnt lgkmcnt(0)")
    wait_lds("L_wq", QT, 1, SPIN)
    if noq & 2: a("s_sleep 30\ns_branch L_pollq_done")
    if noq & 4: a(f"s_mov_b32 {SPN}, 0\ns_branch L_pollq")
    a(f"s_mov_b32 {SPN}, {SPIN}\nL_pollq:\ns_mov_b32 {T0}, {T3}")
    for rb in range(4):
        if rb: a(f"s_add_u32 {T0}, {T0}, 4096")
        for k in range(4): a(f"buffer_load_dwordx4 v[{WB+16*rb+4*k}:{WB+16*rb+4*k+3}], {vL16}, {sW}, {T0} offen offset:{1024*k} sc1")
    a(f"s_sub_u32 {SPN}, {SPN}, 1\ns_cbranch_scc1 L_pollq_done\ns_waitcnt vmcnt(0)")
    tagcheck([WB + 4 * k + 2 for k in range(16)], "v33")
    a("v_cmp_ne_u32 vcc, 0, v33\ns_cbranch_vccnz L_pollq\nL_pollq_done:\ns_waitcnt vmcnt(0)")
    stamp(4)
    for k in range(4):
        for e in range(2):
            r = WB + 4 * k + e
            a(f"v_add_f32 v{r}, v{r}, v{r+16}\nv_add_f32 v{r+32}, v{r+32}, v{r+48}\nv_add_f32 v{r}, v{r}, v{r+32}")
    a("v_lshrrev_b32 v34, 2, v0\nv_and_b32 v35, 3, v0\nv_lshlrev_b32 v34, 6, v34\nv_lshl_add_u32 v34, v35, 2, v34")
    for w in range(4): a(f"v_cvt_pk_bf16_f32 v{48+w}, v{WB+4*w}, v{WB+4*w+1}")
    for w in range(4): a(f"ds_write_b32 v34, v{48+w} offset:{QL+16*w}")
    a(f"s_waitcnt lgkmcnt(0)\ns_barrier\ns_setprio 0\ns_branch L_svc2")

    a(f"L_backlog:\ns_barrier\nds_read_b128 v[{vQ}:{vQ+3}], {vVO} offset:{QL}\ns_waitcnt lgkmcnt(0)")
    stamp(2)
    uid = [0]
    def softmax(last):
        t = vT[0]; uid[0] += 1
        a(f"v_cvt_pk_bf16_f32 {t}, {vS}, {vS}\nv_lshlrev_b32 {t}, 16, {t}\nv_mul_f32 {t}, {SCALE}, {t}\nv_cvt_pk_bf16_f32 {t}, {t}, {t}\nv_lshlrev_b32 {t}, 16, {t}")
        a(f"v_cmp_gt_f32 vcc, {t}, {vM}\ns_cbranch_vccz L_nr{uid[0]}\ns_call_b64 {RET}, L_rescale\nL_nr{uid[0]}:")
        a(f"v_fma_f32 {t}, {t}, {LOG2E}, -{vML}\nv_exp_f32 {t}, {t}\nv_add_f32 {vL}, {vL}, {t}")
        a(f"v_mov_b32_dpp {vT[1]}, {t} row_ror:12 {FULL}\nv_cvt_pk_bf16_f32 v{vB}, {t}, {vT[1]}\nv_mov_b32_dpp v{vB+1}, v{vB} row_ror:8 {FULL}")
        if last:
            a(f"v_add_f32_dpp v19, {vL}, {vL} row_ror:4 {FULL}\nv_add_f32_dpp v19, v19, v19 row_ror:8 {FULL}")
            for sw in ("16", "32"):
                a(f"v_mov_b32 {vT[2]}, v19\nv_permlane{sw}_swap_b32 {vT[2]}, v19\nv_add_f32 v19, v19, {vT[2]}")
    def kpart(sl, last=False):
        for sg in range(4): a(f"v_mfma_f32_16x16x32_bf16 v[{vD+4*sg}:{vD+4*sg+3}], {kreg(sl, sg)}, v[{vQ}:{vQ+3}], 0")
        for k in range(3):
            for sg in range(4):
                d = vD + 4 * sg; u = [u for u in range(4) if u != sg][k]
                a(f"v_add_f32_dpp {vS if k == 2 else vT[sg]}, v{d+u}, {f'v{d+sg}' if k == 0 else vT[sg]} row_ror:{(4*(sg-u))%16} row_mask:0xf bank_mask:{hex(1<<sg)}")
        softmax(last)
    def pv(slot, h):
        r0, r1 = vreg(slot, 2 * h), vreg(slot, 2 * h + 1)
        perms = []
        for w in range(4):
            perms.append(f"v_perm_b32 v{vA+2*(2*w)+h}, v{r1+w}, v{r0+w}, {SELL}")
            perms.append(f"v_perm_b32 v{vA+2*(2*w+1)+h}, v{r1+w}, v{r0+w}, {SELH}")
        if h == 0:
            for p in perms: a(p)
        else:
            mf = [f"v_mfma_f32_16x16x16_bf16 v[{vOc+4*e}:{vOc+4*e+3}], v[{vA+2*e}:{vA+2*e+1}], v[{vB}:{vB+1}], v[{vOc+4*e}:{vOc+4*e+3}]" for e in range(8)]
            for k in range(8):
                a(perms[k])
                if k >= 2: a(mf[k-2])
            a(mf[6]); a(mf[7])
    final_m = 2 * S0 + 2
    def wait_for(n):
        w = 4 * (st["m"] - n - 1)
        if w < 63: a(f"s_waitcnt vmcnt({w})")
    for t in range(S0):
        sl = slot_of(t)
        wait_for(2 * t); kpart(sl)
        wait_for(2 * t + 1); pv(sl, 0); pv(sl, 1)
        for _ in range(99 if t == S0 - 1 else 1):
            if st["m"] >= final_m or st["m"] - 2 * P > 2 * t + 1: break
            issue_group()
    assert st["m"] == final_m
    stamp(3)
    if dbg: a("s_mov_b32 s93, 16\ns_mov_b32 s94, s98")
    vW = vreg(2, 0)
    vN0, vN1, vA1, vA2, vA3, vA4, vA5, vA6, vXo, vX, vZ, vLW, vLM, vL8, vU0, vU1, vWo, vG1, vH1 = (f"v{r}" for r in range(138, 157))
    def wo_issue():
        for i in range(8):
            if i: a(f"s_add_u32 s89, s89, 16384")
            a(f"buffer_load_dwordx2 v[{vW+2*i}:{vW+2*i+1}], {vWo}, {sO}, s89 offen nt")
    def tail_prep():
        a(f"s_lshl_b32 {T0}, {H_}, 2\ns_lshr_b32 {T1}, {JR}, 3\ns_add_u32 {T0}, {T0}, {T1}\ns_lshl_b32 {T2}, {T0}, 3\ns_and_b32 {T1}, {JR}, 4\ns_add_u32 {T1}, {T1}, s3\ns_add_u32 {T2}, {T2}, {T1}")
        a(f"s_lshl_b32 {T0}, {T0}, 7\ns_add_u32 {T0}, {T0}, {T1}\ns_lshl_b32 {T0}, {T0}, 10\ns_and_b32 {T1}, {JR}, 3\ns_lshl_b32 {T3}, {T1}, 8\ns_add_u32 s89, {T0}, {T3}")
        a(f"v_lshrrev_b32 {vU0}, 5, v0\nv_and_b32 {vU1}, 31, v0\nv_lshlrev_b32 {vWo}, 13, {vU0}\nv_lshl_add_u32 {vWo}, {vU1}, 3, {vWo}")
        a(f"s_lshr_b32 s78, {T2}, 1\ns_lshl_b32 s78, s78, 12\ns_and_b32 {T0}, {T2}, 1\ns_lshl_b32 {T0}, {T0}, 6\ns_add_u32 s78, s78, {T0}\ns_add_u32 s78, s78, {H1}")
        a(f"s_lshl_b32 s80, {T1}, 16\ns_lshl_b32 {T0}, {H_}, 3\ns_add_u32 {T0}, {T0}, {X_}\ns_lshl_b32 {T0}, {T0}, 7\ns_add_u32 s80, s80, {T0}\ns_add_u32 s80, s80, {H2}")
        a(f"s_lshl_b32 s88, {A_}, 5\ns_lshl_b32 {T0}, {A_}, 13\ns_add_u32 s81, {T0}, {H2}\ns_add_u32 s87, {T0}, {GA}")
        a(f"s_lshl_b32 s76, {H_}, 16\ns_lshl_b32 {T0}, s3, 14\ns_add_u32 s76, s76, {T0}\ns_lshl_b32 {T0}, {J_}, 7\ns_add_u32 s76, s76, {T0}\ns_add_u32 s76, s76, {H1}")
        a("s_mov_b32 s82, 0xaaaaaaaa\ns_mov_b32 s83, 0xaaaaaaaa")
        a(f"v_mov_b32 {vZ}, 0\nds_read_b64 v[138:139], {vZ} offset:{NL}")
        a(f"s_lshl_b32 {T0}, s3, 9\nv_lshl_add_u32 {vA5}, {vU1}, 1, {vU0}\nv_lshl_add_u32 {vA5}, {vA5}, 3, {T0}\nv_lshlrev_b32 {vG1}, 4, {vU1}\nv_lshl_add_u32 {vG1}, {vU0}, 10, {vG1}")
        a(f"s_mul_i32 {T0}, s3, 528\nv_lshl_add_u32 {vA1}, {vU1}, 4, {T0}")
        a(f"v_and_b32 {vU1}, 7, v0\nv_lshl_add_u32 {vXo}, {vU1}, 1, {vU0}\nv_lshlrev_b32 {vXo}, 1, {vXo}\nv_lshrrev_b32 {vU0}, 3, v0\nv_lshlrev_b32 {vU1}, 4, {vU1}\nv_lshl_add_u32 {vA6}, {vU0}, 13, {vU1}\nv_lshl_add_u32 {vA3}, {vU0}, 12, {vU1}\nv_and_b32 {vU1}, 3, v0")
        a(f"v_lshrrev_b32 {vU0}, 2, v0\nv_lshlrev_b32 {vH1}, 7, {vU0}\nv_lshl_add_u32 {vH1}, {vU1}, 4, {vH1}")
        a(f"s_sub_u32 {T0}, s3, 1\ns_mul_i32 {T1}, {T0}, {OBS}\ns_lshl_b32 {T0}, {T0}, 5\ns_add_u32 {T0}, {T0}, {MLB}")
        a(f"v_lshl_add_u32 {vLM}, {vU1}, 3, {T0}\nv_mul_u32_u24 {vLW}, 528, {vU1}\nv_lshrrev_b32 {vU0}, 4, v0\nv_lshl_add_u32 {vLW}, {vU0}, 4, {vLW}\nv_add_u32 {vLW}, {T1}, {vLW}")
        a(f"v_lshlrev_b32 {vL8}, 3, v0\ns_lshl_b32 {T0}, s3, 3\nv_mov_b32 {vA2}, {T0}\nv_lshlrev_b32 {vA4}, 4, v0")
    def request():
        a(f"s_add_u32 {DD}, {DD}, 1\ns_and_b32 {QS}, {DD}, 3\ns_cmp_eq_u32 {ATT}, 0\ns_cselect_b32 {QS}, {SUB}, {QS}\ns_lshl_b32 {T0}, {QS}, 13\ns_mov_b32 {TKT}, 1\ns_atomic_add {TKT}, {CTR}, {T0} glc")
    for rho in (0, 1):
        a(f"L_loop{rho}:\ns_waitcnt vmcnt(4)")
        if dbg: a(f"s_waitcnt lgkmcnt(0)\ns_mov_b32 m0, s93\ns_add_u32 s93, s93, 1\nv_writelane_b32 {VDBG}, s94, m0\ns_memrealtime s[94:95]")
        a(f"s_cmp_eq_u32 {CNT}, 0\ns_cbranch_scc1 L_dyn{rho}\ns_add_u32 {CUR}, {CUR}, {TSTEP}\nL_go{rho}:")
        for i in range(4): issue(1 - rho, i, CUR)
        a(f"s_cmp_gt_u32 {CNT}, 1\ns_cbranch_scc1 L_nrq{rho}")
        request()
        a(f"s_mov_b32 {CNT}, 1\nL_nrq{rho}:\ns_sub_u32 {CNT}, {CNT}, 1")
        kpart(rho)
        a("s_waitcnt vmcnt(4)")
        for i in range(4, 8): issue(1 - rho, i, CUR)
        if not ckearly: pv(rho, 0); pv(rho, 1)
        a(f"s_cmp_lg_u32 {CNT}, 0\ns_cbranch_scc1 L_nck{rho}\ns_cmp_eq_u32 {QS}, {SUB}\ns_cbranch_scc1 L_nck{rho}\ns_waitcnt lgkmcnt(0)\ns_cmp_lt_u32 {TKT}, {1024-TB}\ns_cbranch_scc1 L_nck{rho}\ns_mov_b32 {ATT}, 0")
        request()
        a(f"L_nck{rho}:")
        if ckearly: pv(rho, 0); pv(rho, 1)
    a("s_branch L_loop0")
    for rho in (0, 1):
        a(f"L_dyn{rho}:\ns_waitcnt lgkmcnt(0)\ns_add_u32 {T0}, {TKT}, {TB}\ns_cmp_ge_u32 {T0}, {1024-THR}\ns_cbranch_scc1 L_trg{rho}\nL_adr{rho}:")
        if THH: a(f"s_cmp_ge_u32 {T0}, {1024-THH}\ns_cselect_b32 {ATT}, 0, {ATT}")
        a(f"s_and_b32 {T1}, {T0}, 1\ns_lshr_b32 {T0}, {T0}, 1\ns_lshl_b32 {T1}, {T1}, 9\ns_add_u32 {T0}, {T0}, {T1}\ns_lshl_b32 {T0}, {T0}, 12\ns_lshl_b32 {T1}, {QS}, 22\ns_add_u32 {T0}, {T0}, {T1}\ns_add_u32 {CUR}, {HB}, {T0}\ns_branch L_go{rho}")
        a(f"L_trg{rho}:\nds_write_b32 v18, v18")
        if THR2: a(f"s_cmp_lt_u32 {T0}, {1024-THR2}\ns_cbranch_scc1 L_tr2{rho}\nds_write_b32 v18, v18 offset:8\nL_tr2{rho}:")
        a(f"s_waitcnt lgkmcnt(0)\ns_cmp_lt_u32 {T0}, 1024\ns_cbranch_scc1 L_adr{rho}")
        stamp(4)
        tail_prep()
        kpart(rho, last=True)
        a("s_mov_b32 exec_lo, 0x000f000f\ns_mov_b32 exec_hi, 0x000f000f")
        a(f"ds_write2_b32 {vLM}, {vML}, v19 offset0:0 offset1:1\ns_mov_b64 exec, -1")
        a("s_waitcnt vmcnt(2)"); pv(rho, 0)
        a("s_waitcnt vmcnt(0)"); pv(rho, 1)
        if rho == 0: a("s_branch L_fin")
    a("L_fin:\ns_mov_b32 exec_lo, 0x000f000f\ns_mov_b32 exec_hi, 0x000f000f")
    for e in range(8): a(f"ds_write_b128 {vLW}, v[{vOc+4*e}:{vOc+4*e+3}] offset:{OB+64*e}")
    a("s_mov_b64 exec, -1")
    wo_issue()
    a("s_branch L_tail")
    a("L_rescale:")
    t = vT[0]; u_, w_ = vT[1], vT[2]
    a(f"v_max_f32 {u_}, {t}, {vM}\nv_max_f32_dpp {u_}, {u_}, {u_} row_ror:4 {FULL}\nv_max_f32_dpp {u_}, {u_}, {u_} row_ror:8 {FULL}")
    for sw in ("16", "32"):
        a(f"v_mov_b32 {w_}, {u_}\nv_permlane{sw}_swap_b32 {w_}, {u_}\nv_max_f32 {u_}, {u_}, {w_}")
    a(f"v_mov_b32 {vM}, {u_}\nv_mul_f32 {u_}, {LOG2E}, {u_}\nv_sub_f32 {w_}, {vML}, {u_}\nv_exp_f32 {w_}, {w_}\nv_mov_b32 {vML}, {u_}\nv_mul_f32 {vL}, {vL}, {w_}")
    for r in range(0, 32, 2): a(f"v_pk_mul_f32 v[{vOc+r}:{vOc+r+1}], v[{vOc+r}:{vOc+r+1}], v[14:15] op_sel_hi:[1,0]")
    a(f"s_setpc_b64 {RET}")

    a("L_svc2:")
    stamp(5)
    tail_prep()
    a(f"v_mul_u32_u24 v6, {8*3584}, {vr}\nv_lshl_add_u32 v6, {vc}, 4, v6\ns_mul_i32 s28, {X_}, {64*3584}\ns_lshl_b32 {T1}, {A_}, 7\ns_add_u32 s28, s28, {T1}")
    a(f"s_lshl_b32 {T1}, {X_}, 7\nv_lshl_add_u32 v7, {vr}, 4, {T1}\nds_read_b128 v[24:27], v7 offset:{XN}\nv_lshlrev_b32 v23, 4, v22\nv_lshlrev_b32 v7, 2, v0")
    a(f"s_lshl_b32 s29, {A_}, 13\ns_add_u32 s29, s29, {GP1}\ns_lshl_b32 {T1}, {X_}, 10\ns_add_u32 s30, s29, {T1}")
    a(f"s_lshr_b32 {T1}, {X_}, 2\ns_lshl_b32 {T2}, {T1}, 9\ns_add_u32 s29, s29, {T2}\ns_lshl_b32 {T2}, {A_}, 1\ns_add_u32 {T2}, {T2}, {T1}")
    a(f"s_and_b32 {T1}, {X_}, 3\ns_lshl_b32 s31, {T2}, 15\ns_lshl_b32 {T3}, {T1}, 8\ns_add_u32 s31, s31, {T3}\ns_lshl_b32 s61, {T1}, 16\ns_lshl_b32 {T2}, {T2}, 7\ns_add_u32 s61, s61, {T2}\ns_add_u32 s61, s61, {GA}")
    W2R, W2P = 160, 192
    a(f"s_cmp_ge_u32 {A_}, 28\ns_cbranch_scc1 L_noglu1")
    def g1_issue(k):
        b = WB + 16 * k
        if k: a(f"s_add_u32 s28, s28, 7168")
        a(f"buffer_load_dwordx4 v[{b}:{b+3}], v6, {s1}, s28 offen nt\nbuffer_load_dwordx4 v[{b+4}:{b+7}], v6, {s1}, s28 offen offset:3584 nt")
        a(f"buffer_load_dwordx4 v[{b+8}:{b+11}], v6, {s3_}, s28 offen nt\nbuffer_load_dwordx4 v[{b+12}:{b+15}], v6, {s3_}, s28 offen offset:3584 nt")
    for k in range(gth): g1_issue(k)
    for k in range(4):
        b = WB + 16 * k
        a(f"s_waitcnt vmcnt({4*(min(k+gth,4)-k-1)}) lgkmcnt(0)")
        if k + gth < 4: g1_issue(k + gth)
        pairdot(b, b + 4, f"v{24+k}", ACC, k == 0); pairdot(b + 8, b + 12, f"v{24+k}", ACC + 8, k == 0)
    redscat8(ACC, "v56"); redscat8(ACC + 8, "v57")
    a("L_noglu1:")
    if pre and prewhen == 1: pretouch()
    stamp(6)
    wait_lds("L_wtrg", TRG, tsleep, SPIN * 8)
    stamp(7)
    if pre and prewhen == 2: pretouch()
    a(f"s_cmp_ge_u32 {A_}, 28\ns_cbranch_scc1 L_noglu2")
    a(f"buffer_store_dwordx4 v[56:59], v23, {sW}, s30 offen sc1\ns_add_u32 s30, s29, 4096\ns_mov_b32 {SPN}, {SPIN}")
    def w2_loads():
        for i in range(32):
            if i and i % 4 == 0: a(f"s_add_u32 s31, s31, 4096")
            a(f"buffer_load_dword v{W2R+i}, v7, {s2_}, s31 offen offset:{1024*(i%4)} nt")
    def w2_perm():
        for k in range(16): a(f"v_perm_b32 v{W2P+2*k}, v{W2R+2*k+1}, v{W2R+2*k}, {SELL}\nv_perm_b32 v{W2P+2*k+1}, v{W2R+2*k+1}, v{W2R+2*k}, {SELH}")
    def w2_dot():
        for k in range(16):
            for c in range(2): a(f"v_dot2c_f32_bf16_dpp v{96+2*(k&1)+c}, v{88+(k>>3)}, v{W2P+2*k+c} row_newbcast:{2*(k&7)} {FULL}")
        a(f"v_add_f32 v100, v96, v98\nv_add_f32 v101, v97, v99")
    if not w2late: w2_loads()
    if THR2:
        wait_lds("L_wtr2", TR2, 1, SPIN * 8)
        a(f"s_mov_b32 {SPN}, {SPIN}")
    a(f"v_mov_b32 v96, 0\nv_mov_b32 v97, 0\nv_mov_b32 v98, 0\nv_mov_b32 v99, 0\nv_mov_b32 v102, {vN0}\nv_mov_b32 v103, {vN1}\nL_pollh:")
    for i in range(4): a(f"buffer_load_dwordx4 v[{72+4*i}:{75+4*i}], {vG1}, {sW}, {('s29','s30')[i>>1]} offen offset:{2048*(i&1)} sc1")
    a(f"s_sub_u32 {SPN}, {SPN}, 1\ns_cbranch_scc1 L_pollh_done\ns_waitcnt vmcnt(0)")
    tagcheck([74, 78, 82, 86], "v88")
    a("v_cmp_ne_u32 vcc, 0, v88\ns_cbranch_vccnz L_pollh\nL_pollh_done:\ns_waitcnt vmcnt(0)")
    if not w2late: w2_perm()
    a("v_add_f32 v88, v72, v76\nv_add_f32 v89, v73, v77\nv_add_f32 v90, v80, v84\nv_add_f32 v91, v81, v85")
    a("v_add_f32 v88, v88, v90\nv_add_f32 v89, v89, v91\nv_permlane32_swap_b32 v88, v89\nv_add_f32 v89, v88, v89\nv_mov_b32 v88, v89\nv_permlane32_swap_b32 v88, v89")
    bfr("v88"); bfr("v89"); silu_bf("v88", "v90")
    a(f"v_mul_f32 v88, v88, v89\nv_mov_b32_dpp v89, v88 quad_perm:[1,1,3,3] {FULL}\nv_cvt_pk_bf16_f32 v89, v88, v89\nv_mov_b32 v88, v89\nv_permlane16_swap_b32 v88, v89")
    if not w2late: w2_dot()
    a("L_noglu2:")
    if not w2late: wo_issue()
    stamp(3)
    a("L_tail:")
    a(f"s_waitcnt lgkmcnt(0)\nv_mov_b32 v39, {vN0}\ns_barrier")
    stamp(8)
    for s_ in range(3): a(f"ds_read_b64 v[{20+2*s_}:{21+2*s_}], {vA2} offset:{MLB+32*s_}")
    for s_ in range(3): a(f"ds_read_b128 v[{72+4*s_}:{75+4*s_}], {vA1} offset:{OB+OBS*s_}")
    a("s_waitcnt lgkmcnt(3)\nv_max3_f32 v32, v20, v22, v24")
    for s_ in range(3): a(f"v_sub_f32 v{20+2*s_}, v{20+2*s_}, v32")
    for s_ in range(3): a(f"v_exp_f32 v{20+2*s_}, v{20+2*s_}")
    a("v_mul_f32 v33, v21, v20\nv_fmac_f32 v33, v23, v22\nv_fmac_f32 v33, v25, v24\ns_mov_b32 exec_hi, 0")
    a("s_waitcnt lgkmcnt(1)")
    for i in range(4): a(f"v_mul_f32 v{72+i}, v{72+i}, v20")
    for i in range(4): a(f"v_fmac_f32 v{72+i}, v{76+i}, v22")
    a("v_cndmask_b32 v38, v32, v33, s[82:83]\ns_waitcnt lgkmcnt(0)")
    for i in range(4): a(f"v_fmac_f32 v{72+i}, v{80+i}, v24")
    a("v_cvt_pk_bf16_f32 v36, v72, v73\nv_cvt_pk_bf16_f32 v37, v74, v75")
    a(f"buffer_store_dwordx4 v[36:39], {vA3}, {sW}, s76 offen sc1\ns_mov_b64 exec, -1")
    stamp(9)
    def h1_load(i): a(f"buffer_load_dwordx4 v[{20+4*i}:{23+4*i}], {vH1}, {sW}, s78 offen offset:{2048*i} sc1")
    PW = 52
    def wo_perm():
        for i in range(8): a(f"v_permlane32_swap_b32 v{vW+2*i}, v{vW+2*i+1}")
        for i in range(8): a(f"v_perm_b32 v{PW+2*i}, v{vW+2*i+1}, v{vW+2*i}, {SELL}\nv_perm_b32 v{PW+2*i+1}, v{vW+2*i+1}, v{vW+2*i}, {SELH}")
    a(f"s_mov_b32 {SPN}, {SPIN}\nv_mov_b32 v44, 0\nv_mov_b32 v45, 0\nv_mov_b32 v46, 0\nv_mov_b32 v47, 0\nv_mov_b32 v70, {vN0}\nv_mov_b32 v71, {vN1}")
    if w2late:
        a(f"s_cmp_lg_u32 s3, 0\ns_cbranch_scc1 L_wop")
        wo_issue()
        a(f"s_cmp_ge_u32 {A_}, 28\ns_cbranch_scc1 L_wop0")
        w2_loads()
        a("s_waitcnt vmcnt(32)"); wo_perm()
        for i in range(2): h1_load(i)
        a("s_waitcnt vmcnt(2)"); w2_perm(); w2_dot()
        a(f"buffer_store_dwordx4 v[100:103], {vA6}, {sW}, s61 offen sc1\ns_waitcnt vmcnt(1)\ns_branch L_poll1c")
        a("L_wop0:\ns_waitcnt vmcnt(0)\nL_wop:")
    a("s_waitcnt vmcnt(1)")
    wo_perm()
    if h1s > 1: a(f"s_sleep {h1s}")
    for i in range(2): h1_load(i)
    if not w2late:
        a(f"s_cmp_lg_u32 s3, 0\ns_cbranch_scc1 L_poll1\ns_cmp_ge_u32 {A_}, 28\ns_cbranch_scc1 L_poll1")
        a(f"buffer_store_dwordx4 v[100:103], {vA6}, {sW}, s61 offen sc1\ns_waitcnt vmcnt(1)\ns_branch L_poll1c")
    def repoll(name, loadf, n):
        a(f"s_or_b64 s[66:67], {CM[0]}, {CM[1]}")
        for i in range(2, n): a(f"s_or_b64 s[66:67], s[66:67], {CM[i]}")
        a(f"s_cbranch_scc0 {name}_done")
        a(f"s_sub_u32 {SPN}, {SPN}, 1\ns_cbranch_scc1 {name}_done")
        for i in range(n):
            a(f"s_cmp_eq_u64 {CM[i]}, 0\ns_cbranch_scc1 {name}_s{i}")
            loadf(i)
            a(f"{name}_s{i}:")
        a(f"s_branch {name}\n{name}_done:")
    a("L_poll1:\ns_waitcnt vmcnt(0)\nL_poll1c:")
    for i in range(2): a(f"v_cmp_ne_u32 {CM[i]}, v{23+4*i}, {vN0}")
    for i in range(2): a(f"v_mov_b32_dpp v{36+i}, v{22+4*i} quad_perm:[0,0,2,2] {FULL}")
    a("v_lshlrev_b32 v28, 16, v20\nv_max_f32 v41, v36, v37\nv_and_b32 v29, 0xffff0000, v20\nv_lshlrev_b32 v30, 16, v21")
    repoll("L_poll1", h1_load, 2)
    stamp(10)
    a(f"v_max_f32_dpp v41, v41, v41 row_ror:4 {FULL}\nv_and_b32 v31, 0xffff0000, v21\nv_lshlrev_b32 v32, 16, v24\nv_max_f32_dpp v41, v41, v41 row_ror:8 {FULL}")
    a("v_mov_b32 v42, v41\nv_and_b32 v33, 0xffff0000, v24\nv_lshlrev_b32 v34, 16, v25\nv_permlane16_swap_b32 v42, v41\nv_max_f32 v41, v41, v42")
    a("v_mov_b32 v42, v41\nv_and_b32 v35, 0xffff0000, v25\ns_nop 0\nv_permlane32_swap_b32 v42, v41\nv_max_f32 v41, v41, v42")
    a("v_sub_f32 v36, v36, v41\nv_sub_f32 v37, v37, v41\nv_exp_f32 v36, v36\nv_exp_f32 v37, v37")
    for r in (28, 29, 30, 31, 22): a(f"v_mul_f32 v{r}, v{r}, v36")
    for r in (28, 29, 30, 31, 22): a(f"v_fmac_f32 v{r}, v{r+4}, v37")
    a("v_permlane32_swap_b32 v28, v29\nv_mov_b32 v26, v22\nv_permlane32_swap_b32 v30, v31\nv_add_f32 v28, v28, v29\nv_permlane32_swap_b32 v26, v22\nv_add_f32 v30, v30, v31\nv_add_f32 v22, v22, v26")
    a("v_mov_b32 v26, v22\nv_permlane16_swap_b32 v28, v30\nv_add_f32 v28, v28, v30\nv_permlane16_swap_b32 v26, v22\nv_add_f32 v22, v22, v26")
    for n in (4, 8): a(f"v_add_f32_dpp v28, v28, v28 row_ror:{n} {FULL}\nv_add_f32_dpp v22, v22, v22 row_ror:{n} {FULL}")
    a(f"v_rcp_f32_dpp v22, v22 quad_perm:[1,1,3,3] {FULL}\nv_mul_f32 v28, v28, v22\nv_mov_b32 v29, v28\nv_permlane32_swap_b32 v29, v28\nv_cvt_pk_bf16_f32 v28, v29, v28\nv_mov_b32 v29, v28\nv_permlane16_swap_b32 v29, v28")
    for k in range(8):
        for c in range(2): a(f"v_dot2c_f32_bf16_dpp v{44+2*(k&1)+c}, v{29-(k&1)}, v{PW+2*k+c} row_newbcast:{k>>1} {FULL}")
    a(f"v_add_f32 v44, v44, v46\nv_add_f32 v45, v45, v47\nds_write_b64 {vA5}, v[44:45] offset:{SX}\ns_waitcnt lgkmcnt(0)\ns_barrier")
    a("s_cmp_lg_u32 s3, 0\ns_cbranch_scc1 L_notpub")
    for w in range(4): a(f"ds_read_b64 v[{20+2*w}:{21+2*w}], {vL8} offset:{SX+512*w}")
    a("s_waitcnt lgkmcnt(2)\nv_add_f32 v20, v20, v22\nv_add_f32 v21, v21, v23\ns_waitcnt lgkmcnt(0)\nv_add_f32 v24, v24, v26\nv_add_f32 v25, v25, v27\nv_add_f32 v68, v20, v24\nv_add_f32 v69, v21, v25")
    a(f"buffer_store_dwordx4 v[68:71], {vA6}, {sW}, s80 offen sc1")
    stamp(11)
    a("s_branch L_done\nL_notpub:")
    a(f"s_cmp_lg_u32 s3, 1\ns_cbranch_scc1 L_done\ns_cmp_eq_u32 {FIN}, -1\ns_cbranch_scc1 L_done")
    def red2(c, tmp):
        a(f"v_permlane32_swap_b32 v{c}, v{c+1}\nv_add_f32 v{c}, v{c}, v{c+1}\nv_mov_b32 {tmp}, v{c}\nv_permlane16_swap_b32 {tmp}, v{c}\nv_add_f32 v{c}, v{c}, {tmp}")
        a(f"v_add_f32_dpp v{c}, v{c}, v{c} row_ror:8 {FULL}")
    def g_load(i): a(f"buffer_load_dwordx4 v[{72+4*i}:{75+4*i}], {vA4}, {sW}, {('s87','s79')[i>>2]} offen offset:{1024*(i&3)} sc1")
    def h2_load(i): a(f"buffer_load_dwordx4 v[{20+4*i}:{23+4*i}], {vA4}, {sW}, {('s81','s75')[i>>2]} offen offset:{1024*(i&3)} sc1")
    def tree(base, n, d0, d1):
        for e, d in ((0, d0), (1, d1)):
            a(f"v_add_f32 {d}, v{base+e}, v{base+4+e}\nv_add_f32 v104, v{base+8+e}, v{base+12+e}\nv_add_f32 v105, v{base+16+e}, v{base+20+e}\nv_add_f32 {d}, {d}, v104\nv_add_f32 v105, v105, v{base+24+e}")
            if n == 8: a(f"v_add_f32 {d}, {d}, v{base+28+e}")
            a(f"v_add_f32 {d}, {d}, v105")
    a(f"s_mov_b32 {SPN}, {SPIN}\ns_add_u32 s79, s87, 4096\ns_add_u32 s75, s81, 4096\nbuffer_load_ushort {vX}, {vXo}, {sX}, s88 offen")
    for i in range(7): g_load(i)
    a("L_pollg:\ns_waitcnt vmcnt(0)")
    for i in range(7): a(f"v_cmp_ne_u64 {CM[i]}, v[{74+4*i}:{75+4*i}], v[138:139]")
    repoll("L_pollg", g_load, 7)
    a(f"s_cmp_lg_u32 {FIN}, 0\ns_cbranch_scc1 L_nonon\ns_mov_b32 {T0}, {NON}\ns_mov_b64 exec, 1\nbuffer_store_dwordx2 v[138:139], {vZ}, {sW}, {T0} offen sc1\ns_mov_b64 exec, -1\nL_nonon:")
    tree(72, 7, "v106", "v107")
    red2(106, "v104")
    bfr("v106"); silu_bf("v106", "v107"); a(f"v_lshlrev_b32 {vX}, 16, {vX}")
    for i in range(8): h2_load(i)
    stamp(15)
    a(f"s_mov_b32 {SPN}, {SPIN}\nL_poll2:\ns_waitcnt vmcnt(0)")
    for i in range(8): a(f"v_cmp_ne_u64 {CM[i]}, v[{22+4*i}:{23+4*i}], v[138:139]")
    tree(20, 8, "v108", "v109")
    repoll("L_poll2", h2_load, 8)
    stamp(12)
    red2(108, "v104")
    bfr("v108"); a("v_mul_f32 v108, v108, v106"); bfr("v108"); a(f"v_add_f32 v108, v108, {vX}\nv_cvt_pk_bf16_f32 v108, v108, v108")
    a(f"s_mov_b32 exec_lo, 0xff\ns_mov_b32 exec_hi, 0xff\nbuffer_store_short v108, {vXo}, {sY}, s88 offen {outsc}\ns_mov_b64 exec, -1")
    a("L_done:")
    if dbg:
        stamp(13)
        a("s_getreg_b32 s98, hwreg(HW_REG_XCC_ID)")
        a(f"v_writelane_b32 {VDBG}, s98, 14")
        a(f"s_lshl_b32 {T0}, s2, 2\ns_add_u32 {T0}, {T0}, s3\ns_lshl_b32 {T0}, {T0}, 8\ns_add_u32 {T0}, {T0}, {DBG}\ns_sub_u32 s16, s16, {wsb}\ns_subb_u32 s17, s17, 0\nv_lshlrev_b32 v12, 2, v0\nbuffer_store_dword {VDBG}, v12, {sW}, {T0} offen\ns_add_u32 {T0}, {T0}, 0x40000\nbuffer_store_dword v246, v12, {sW}, {T0} offen")
    a("L_end:\ns_endpgm")
    a.pad()
    a('.section .rodata,"a"\n.p2align 6')
    a(f".amdhsa_kernel {KN}_kernel")
    a("""  .amdhsa_next_free_vgpr 512
  .amdhsa_next_free_sgpr 102
  .amdhsa_accum_offset 256
  .amdhsa_group_segment_fixed_size 0
  .amdhsa_kernarg_size 96
  .amdhsa_user_sgpr_count 2
  .amdhsa_user_sgpr_kernarg_segment_ptr 1
  .amdhsa_system_sgpr_workgroup_id_x 1
  .amdhsa_float_denorm_mode_32 3
.end_amdhsa_kernel""")
    return a.text()
if __name__ == "__main__":
    kw = eval("dict(%s)" % (sys.argv[2] if len(sys.argv) > 2 else ""))
    open(sys.argv[1], "w").write(gen(**kw))
```

```python
import sys
from asmlib import *
KN = "recurrent_scan__gqa_block_cached__glu_gated_swiglu__decode"
QP, TK, NON, GP1, GA, H1, H2, DBG = 0x0, 0x20000, 0x28000, 0x30000, 0x70000, 0xC0000, 0x140000, 0x400000
XN, QL, NL, TRG, QT, TR2, MLB, OB = 0, 1024, 2048, 2056, 2060, 2064, 2080, 2176
SX = 0
OBS = 2112
SBUF = OB + 3 * OBS
SPIN = 1 << 20
FULL = "row_mask:0xf bank_mask:0xf"

def gen(P=14, E=2, NTOT=38, R=4, THR=26, MQ=7, dbg=False, wsb=0, tsleep=4, gearly=False, al=0, h2o=2, h2s=0, h1s=1, THH=36, ckearly=True, nearly=True, outsc='sc1', gth=4, noq=0, THR2=0, w2late=False, touch=0, pre=7, prewhen=2, cpf=True, deep=False):
    a = Asm()
    LDS_BYTES = SBUF + 3 * NTOT * 256
    hdr = open("cdna_kernels/" + KN + ".s.ref").read().split("; Override launch")[0]
    a.L += hdr.rstrip().split("\n")
    a(f"; @launch grid=(256,1,1) block=(256,1,1) lds={LDS_BYTES}")
    a("""; ---------------------------------------------------------------------------------------------------------
; ---------------------------------------------------------------------------------------------------------""")
    a('.amdgcn_target "amdgcn-amd-amdhsa--gfx950"\n.text')
    if al: a(f".p2align {al}")
    a(f".globl {KN}_kernel\n.p2align 8\n.type {KN}_kernel,@function\n{KN}_kernel:")
    sK, sV, sW, sO = "s[8:11]", "s[12:15]", "s[16:19]", "s[20:23]"
    sQ, sX, sY, s1, s3_, s2_ = "s[24:27]", "s[32:35]", "s[36:39]", "s[40:43]", "s[44:47]", "s[48:51]"
    X_, A_, H_, SUB, J_, FIN = "s52", "s53", "s54", "s55", "s56", "s59"
    CUR, CNT, ATT, DD, HB, QS, TKT = "s30", "s60", "s61", "s31", "s28", "s29", "s86"
    CTR, RET = "s[62:63]", "s[64:65]"
    T0, T1, T2, T3 = "s66", "s67", "s68", "s69"
    SELL, SELH, SCALE, LOG2E, SPN, JR = "s70", "s71", "s72", "s73", "s74", "s77"
    CM = ["s[90:91]", "s[92:93]", "s[94:95]", "s[84:85]", "s[4:5]", "s[6:7]", "s[26:27]", "s[24:25]"]
    VDBG = "v3"
    def stamp(k):
        if dbg: a(f"s_memrealtime s[98:99]\ns_waitcnt lgkmcnt(0)\nv_writelane_b32 {VDBG}, s98, {k}")
    def srd(base, n): a(f"s_mov_b32 s{base+2}, {hex(n)}\ns_mov_b32 s{base+3}, 0x20000")
    def bfr(r): a(f"v_cvt_pk_bf16_f32 {r}, {r}, {r}\nv_lshlrev_b32 {r}, 16, {r}")
    def silu_bf(r, tmp):
        a(f"v_mul_f32 {tmp}, {LOG2E}, {r}\nv_exp_f32 {tmp}, -{tmp}\nv_add_f32 {tmp}, 1.0, {tmp}\nv_rcp_f32 {tmp}, {tmp}\nv_mul_f32 {r}, {r}, {tmp}"); bfr(r)
    a(f"s_lshr_b32 {A_}, s2, 3\ns_cmp_ge_u32 {A_}, 32\ns_cbranch_scc1 L_end")
    for base, off in ((8, 8), (12, 16), (24, 24), (32, 0), (16, 88)): a(f"s_load_dwordx2 s[{base}:{base+1}], s[0:1], {off}")
    a("v_readfirstlane_b32 s3, v0\nv_and_b32 v0, 63, v0")
    if dbg: a("s_memrealtime s[96:97]")
    a(f"s_and_b32 {X_}, s2, 7\ns_and_b32 {H_}, {A_}, 7\ns_lshr_b32 {SUB}, {A_}, 3\ns_lshr_b32 s3, s3, 6\ns_cbranch_scc1 L_stream")
    def late_setup():
        for base, off in ((20, 32), (36, 72), (40, 48), (44, 56), (48, 64)): a(f"s_load_dwordx2 s[{base}:{base+1}], s[0:1], {off}")
        for base, n in ((20, 0x400000), (36, 1024), (40, 512*3584), (44, 512*3584), (48, 1792*1024)): srd(base, n)
        a(f"s_mov_b32 {SELL}, 0x05040100\ns_mov_b32 {SELH}, 0x07060302\ns_mov_b32 {SCALE}, {fhex(128**-0.5)}\ns_mov_b32 {LOG2E}, {fhex(1.4426950408889634)}")
        a(f"s_lshl_b32 {J_}, {SUB}, 3\ns_add_u32 {J_}, {J_}, {X_}\ns_lshl_b32 {JR}, {X_}, 2\ns_add_u32 {JR}, {JR}, {SUB}")
        a(f"s_sub_u32 {T0}, {X_}, {A_}\ns_and_b32 {T0}, {T0}, 7\ns_cmp_eq_u32 {T0}, 4\ns_cselect_b32 {FIN}, {A_}, -1")
    vL16, vr, vc, WB, ACC = "v2", "v4", "v5", 64, 40
    if cpf:
        a(f"s_getpc_b64 s[4:5]\nL_pc:\ns_lshl_b32 s6, {A_}, 7\nv_lshl_add_u32 v2, v0, 12, s6\nv_cmp_gt_u32 vcc, L_end-L_pc, v2\ns_setprio 3\ns_mov_b64 exec, vcc\nglobal_load_dword v247, v2, s[4:5]\ns_mov_b64 exec, -1")
    else: a('s_setprio 3')
    a(f"v_lshlrev_b32 {vL16}, 4, v0\nv_lshrrev_b32 {vr}, 3, v0\nv_and_b32 {vc}, 7, v0\nv_lshlrev_b32 v6, 17, {vr}\nv_lshl_add_u32 v6, {vc}, 4, v6\nv_mov_b32 v21, 0\nv_mov_b32 v20, {TRG}")
    srd(24, 0x400000); srd(32, 1024); srd(16, 0x20000000 - wsb)
    a(f"s_lshl_b32 {T0}, {SUB}, 20\ns_lshl_b32 {T2}, {H_}, 10\ns_add_u32 {T0}, {T0}, {T2}\ns_lshl_b32 {T2}, {X_}, 7\ns_add_u32 {T0}, {T0}, {T2}")
    a("s_waitcnt lgkmcnt(0)")
    a(f"buffer_load_dwordx4 v[8:11], {vL16}, {sX}, 0 offen\nds_write2_b32 v20, v21, v21 offset0:0 offset1:1\nds_write_b32 v20, v21 offset:8")
    for i in range(16):
        if i: a(f"s_add_u32 {T0}, {T0}, 8192")
        a(f"buffer_load_dwordx4 v[{WB+4*i}:{WB+4*i+3}], v6, {sQ}, {T0} offen nt")
    a("s_waitcnt lgkmcnt(0)\ns_barrier\ns_branch L_svc1")

    vKO, vVO, vQ = "v1", "v2", 4
    vM, vML, vL, vS, vT = "v8", "v9", "v10", "v11", ["v12", "v13", "v14", "v15"]
    vB, vD, vA, vOc, vV0 = 16, 20, 36, 52, 84
    kreg = lambda slot, i: f"a[{16*slot+4*i}:{16*slot+4*i+3}]"
    vreg = lambda slot, i: vV0 + 16 * slot + 4 * i
    a("L_stream:")
    a(f"s_lshl_b32 {HB}, {H_}, 24\ns_lshl_b32 {T0}, {X_}, 9\ns_mul_i32 {T1}, {SUB}, 3\ns_add_u32 {T0}, {T0}, {T1}\ns_add_u32 {T0}, {T0}, s3\ns_sub_u32 {T0}, {T0}, 1\ns_lshl_b32 {T0}, {T0}, 12\ns_add_u32 {CUR}, {HB}, {T0}")
    a(f"v_lshrrev_b32 v12, 4, v0\nv_lshlrev_b32 v12, 6, v12\nv_bfe_u32 v13, v0, 2, 2\nv_and_b32 v14, 3, v0\nv_lshl_add_u32 v12, v13, 8, v12\nv_lshl_add_u32 {vKO}, v14, 4, v12\nv_lshlrev_b32 {vVO}, 4, v0")
    srd(8, 0x8000000); srd(12, 0x8000000)
    TSTEP = 12 * 4096
    NK = NTOT; S0 = P + E; NV = NK - R; TB = 24 * NTOT
    assert (NK - 2 - S0) % 2 == 0 and NK - 2 - S0 >= 2 and NV % 2 == 0 and R >= 4 and P <= 16 and E <= P - 2
    CUR0, vSA, vSR = "s58", "v116", 117
    perm = [None] * P
    perm[S0 % P] = 0; perm[(S0 + 1) % P] = 1
    fr = iter(range(2, P))
    perm = [p if p is not None else next(fr) for p in perm]
    slot_of = lambda t: perm[t % P]
    def issue(slot, i, soff):
        if i < 4: a(f"buffer_load_dwordx4 {kreg(slot, i)}, {vKO}, {sK}, {soff} offen offset:{i*1024} nt")
        else:
            r = vreg(slot, i - 4); a(f"buffer_load_dwordx4 v[{r}:{r+3}], {vVO}, {sV}, {soff} offen offset:{(i-4)*1024} nt")
    def dstamp():
        if dbg: a(f"s_waitcnt lgkmcnt(0)\ns_mov_b32 m0, s93\ns_add_u32 s93, s93, 1\nv_writelane_b32 v246, s94, m0\ns_memrealtime s[94:95]")
    st = {"m": 0}
    def issue_group():
        m = st["m"]
        if m > 0: a(f"s_add_u32 {CUR}, {CUR}, {TSTEP}")
        if m >= 2: a("s_waitcnt vmcnt(4)")
        for i in range(4): issue(slot_of(m), i, CUR)
        st["m"] = m + 1
    a("s_waitcnt lgkmcnt(0)")
    if dbg: a("s_memrealtime s[94:95]")
    a("s_barrier")
    if dbg: a("s_memrealtime s[92:93]")
    a(f"s_mov_b32 {CUR0}, {CUR}")
    for m in range(P):
        issue_group()
        if m == MQ: a("ds_write_b32 v18, v18 offset:4")
        if m == 1:
            a(f"s_add_u32 s16, s16, {wsb}\ns_addc_u32 s17, s17, 0"); srd(16, 0x20000000 - wsb); srd(32, 1024)
            late_setup()
            a(f"v_mov_b32 {vM}, 0xff7fffff\nv_mov_b32 {vML}, 0xff7fffff\nv_mov_b32 {vL}, 0\nv_mov_b32 {vS}, 0\nv_mov_b32 v18, {TRG}")
            for r in range(32): a(f"v_mov_b32 v{vOc+r}, 0")
            a(f"s_sub_u32 {T0}, s3, 1\ns_mul_i32 {T0}, {T0}, {NK*256}\ns_add_u32 {T0}, {T0}, {SBUF}\nv_lshl_add_u32 {vSA}, v0, 2, {T0}\ns_mov_b32 {ATT}, 1\ns_add_u32 {DD}, s3, {X_}\ns_lshl_b32 {T0}, {H_}, 10\ns_add_u32 {T0}, {T0}, {TK}\ns_add_u32 s62, s16, {T0}\ns_addc_u32 s63, s17, 0\ns_mov_b32 {QS}, {SUB}")
            if dbg: a(f"v_mov_b32 {VDBG}, 0\nv_mov_b32 v246, 0\ns_waitcnt lgkmcnt(0)\nv_writelane_b32 {VDBG}, s96, 0\nv_writelane_b32 {VDBG}, s94, 5\nv_writelane_b32 {VDBG}, s92, 6")
    stamp(1)
    a("s_branch L_backlog")

    a("L_svc1:")
    a(f"s_add_u32 s16, s16, {wsb}\ns_addc_u32 s17, s17, 0\ns_mov_b32 {T2}, {NON}\nbuffer_load_dwordx2 v[58:59], v21, {sW}, {T2} offen sc1")
    a(f"s_lshl_b32 {T1}, {A_}, 10\ns_add_u32 {T1}, {T1}, {TK}\ns_lshl_b32 {T2}, {X_}, 7\ns_add_u32 {T1}, {T1}, {T2}")
    NST = 1
    if dbg: a(f"v_mov_b32 {VDBG}, 0\nv_mov_b32 v246, 0\nv_writelane_b32 {VDBG}, s96, 0")
    late_setup_pos = len(a.L)
    def allreduce(r, tmp, op="v_add_f32"):
        for n in (8, 4, 2, 1): a(f"{op}_dpp {r}, {r}, {r} row_ror:{n} {FULL}")
        for sw in ("16", "32"): a(f"v_mov_b32 {tmp}, {r}\nv_permlane{sw}_swap_b32 {tmp}, {r}\n{op} {r}, {r}, {tmp}")
    a(f"s_cmp_lg_u32 {X_}, 0\ns_cbranch_scc1 L_noini\ns_mov_b64 exec, 1\nbuffer_store_dword v21, v21, {sW}, {T1} offen sc1\ns_mov_b64 exec, -1\ns_waitcnt vmcnt({16+NST+1})\nL_noini:")
    late_setup()
    a(f"v_bfe_u32 v22, v0, 5, 1\nv_bfe_u32 v23, v0, 4, 1\nv_lshlrev_b32 v22, 2, v22\nv_lshl_add_u32 v22, v23, 1, v22\nv_bfe_u32 v23, v0, 3, 1\nv_add_u32 v22, v22, v23\nv_lshl_add_u32 v22, {vc}, 3, v22\nv_lshlrev_b32 v23, 3, v22")
    a(f"s_lshl_b32 {T0}, {SUB}, 8\nv_lshl_add_u32 v20, {vr}, 5, {T0}")
    a(f"s_cmp_eq_u32 {X_}, 0\ns_cbranch_scc1 L_xw\ns_waitcnt vmcnt({16+NST})\nL_xw:")
    for w in range(4): a(f"v_lshlrev_b32 v{24+2*w}, 16, v{8+w}\nv_and_b32 v{25+2*w}, 0xffff0000, v{8+w}")
    a("v_add_f32 v32, v24, v25\nv_add_f32 v33, v26, v27\nv_add_f32 v34, v28, v29\nv_add_f32 v35, v30, v31\nv_add_f32 v32, v32, v33\nv_add_f32 v34, v34, v35\nv_add_f32 v32, v32, v34")
    allreduce("v32", "v33")
    a(f"v_mul_f32 v32, {fhex(1/512)}, v32")
    for i in range(8): a(f"v_sub_f32 v{40+i}, v{24+i}, v32")
    a("v_mul_f32 v34, v40, v40\nv_mul_f32 v35, v41, v41")
    for i in range(2, 8): a(f"v_fmac_f32 v{34+(i&1)}, v{40+i}, v{40+i}")
    a("v_add_f32 v34, v34, v35")
    allreduce("v34", "v33")
    a(f"v_mul_f32 v34, {fhex(1/512)}, v34")
    bfr("v32"); bfr("v34")
    a(f"v_add_f32 v34, {fhex(1e-5)}, v34"); bfr("v34")
    a("v_sqrt_f32 v34, v34"); bfr("v34"); a("v_rcp_f32 v34, v34")
    for i in range(8): a(f"v_sub_f32 v{40+i}, v{24+i}, v32")
    for w in range(4): a(f"v_cvt_pk_bf16_f32 v{48+w}, v{40+2*w}, v{41+2*w}")
    for w in range(4): a(f"v_lshlrev_b32 v{40+2*w}, 16, v{48+w}\nv_and_b32 v{41+2*w}, 0xffff0000, v{48+w}")
    for i in range(8): a(f"v_mul_f32 v{40+i}, v{40+i}, v34")
    for w in range(4): a(f"v_cvt_pk_bf16_f32 v{48+w}, v{40+2*w}, v{41+2*w}")
    a(f"ds_write_b128 {vL16}, v[48:51] offset:{XN}")
    a(f"s_waitcnt lgkmcnt(0)\nds_read_b128 v[24:27], v20 offset:{XN}\nds_read_b128 v[28:31], v20 offset:{XN+16}\ns_waitcnt lgkmcnt(0)")
    stamp(1)
    def pairdot(r0, r1, xp, acc, first, tmps=("v60", "v61", "v62", "v63")):
        for w in range(4):
            for hh, sel in ((0, SELL), (1, SELH)):
                tm = tmps[(2*w+hh) % len(tmps)]
                a(f"v_perm_b32 {tm}, v{r1+w}, v{r0+w}, {sel}")
                a(f"v_dot2_f32_bf16 v{acc+2*w+hh}, {tm}, {xp}, {'0' if first else 'v%d' % (acc+2*w+hh)}")
    for k in range(8):
        a(f"s_waitcnt vmcnt({16-2*k-2+NST})")
        pairdot(WB + 8*k, WB + 8*k + 4, f"v{24+k}", ACC, k == 0)
    def redscat8(acc, out):
        for e in range(4): a(f"v_permlane32_swap_b32 v{acc+e}, v{acc+e+4}")
        for e in range(4): a(f"v_add_f32 v{acc+e}, v{acc+e}, v{acc+e+4}")
        for e in range(2): a(f"v_permlane16_swap_b32 v{acc+e}, v{acc+e+2}")
        for e in range(2): a(f"v_add_f32 v{acc+e}, v{acc+e}, v{acc+e+2}")
        if out:
            a(f"v_add_f32_dpp {out}, v{acc}, v{acc} row_ror:8 row_mask:0xf bank_mask:0x3\nv_add_f32_dpp {out}, v{acc+1}, v{acc+1} row_ror:8 row_mask:0xf bank_mask:0xc")
    redscat8(ACC, None)
    a(f"s_lshl_b32 {T3}, {H_}, 14\ns_lshl_b32 {T2}, {J_}, 9\ns_add_u32 {T0}, {T3}, {T2}")
    a(f"v_add_f32_dpp v56, v{ACC}, v{ACC} row_ror:8 {FULL}\nv_add_f32_dpp v57, v{ACC+1}, v{ACC+1} row_ror:8 {FULL}")
    a(f"s_mov_b32 {T1}, 1664525\ns_waitcnt vmcnt(0)\nv_mul_lo_u32 v58, v58, {T1}\nv_add_u32 v58, 0x3c6ef35f, v58")
    a(f"s_mov_b32 exec_lo, 0x00ff00ff\ns_mov_b32 exec_hi, 0x00ff00ff\n{'s_nop 0' if noq&1 else f'buffer_store_dwordx4 v[56:59], v23, {sW}, {T0} offen sc1'}\ns_mov_b64 exec, -1")
    stamp(2)
    a(f"ds_write_b64 v21, v[58:59] offset:{NL}")
    if touch:
        a(f"s_waitcnt lgkmcnt(0)\ns_mov_b64 exec, 1\ns_lshl_b32 {T0}, {H_}, 19\nbuffer_load_dword v248, v21, {sO}, {T0} offen\nbuffer_load_dword v249, v21, {sY}, 0 offen\nbuffer_load_dword v250, v21, {s2_}, 0 offen")
        a(f"s_mov_b32 {T0}, {H1}\nbuffer_load_dword v251, v21, {sW}, {T0} offen\ns_mov_b32 {T0}, {H2}\nbuffer_load_dword v252, v21, {sW}, {T0} offen\ns_mov_b64 exec, -1")
    def pretouch():
        a("; prefetch (values unused) of the scratch lines this workgroup is about to write")
        a(f"v_lshlrev_b32 v248, 12, v0\ns_mov_b64 exec, 0xffff")
        if pre & 1: a(f"s_lshl_b32 {T0}, {H_}, 16\ns_lshl_b32 {T1}, {J_}, 7\ns_add_u32 {T0}, {T0}, {T1}\ns_add_u32 {T0}, {T0}, {H1}\nbuffer_load_dword v249, v248, {sW}, {T0} offen")
        if pre & 2: a(f"s_lshl_b32 {T0}, {SUB}, 16\ns_lshl_b32 {T1}, {H_}, 3\ns_add_u32 {T1}, {T1}, {X_}\ns_lshl_b32 {T1}, {T1}, 7\ns_add_u32 {T0}, {T0}, {T1}\ns_add_u32 {T0}, {T0}, {H2}\ns_mov_b64 exec, 0xff\nv_lshlrev_b32 v248, 13, v0\nbuffer_load_dword v250, v248, {sW}, {T0} offen")
        if pre & 4: a(f"s_and_b32 {T0}, {X_}, 3\ns_lshl_b32 {T0}, {T0}, 16\ns_lshr_b32 {T1}, {X_}, 2\ns_lshl_b32 {T2}, {A_}, 1\ns_add_u32 {T1}, {T1}, {T2}\ns_lshl_b32 {T1}, {T1}, 7\ns_add_u32 {T0}, {T0}, {T1}\ns_add_u32 {T0}, {T0}, {GA}\nbuffer_load_dword v251, v248, {sW}, {T0} offen")
        a("s_mov_b64 exec, -1")
    if pre and prewhen == 0: pretouch()
    def tagcheck(regs, acc):
        for n, r in enumerate(regs):
            a(f"v_xor_b32 {acc}, v{r}, v58" if n == 0 else f"v_bitop3_b32 {acc}, v{r}, v58, {acc} bitop3:0xbe")
            a(f"v_bitop3_b32 {acc}, v{r+1}, v59, {acc} bitop3:0xbe")
    def wait_lds(name, off, sleep, bound):
        a(f"s_mov_b32 {SPN}, {bound}\n{name}:\ns_sleep {sleep}\nds_read_b32 v33, v21 offset:{off}\ns_sub_u32 {SPN}, {SPN}, 1\ns_cbranch_scc1 {name}_d\ns_waitcnt lgkmcnt(0)\nv_cmp_eq_u32 vcc, 0, v33\ns_cbranch_vccnz {name}\n{name}_d:\ns_waitcnt lgkmcnt(0)")
    wait_lds("L_wq", QT, 1, SPIN)
    if noq & 2: a("s_sleep 30\ns_branch L_pollq_done")
    if noq & 4: a(f"s_mov_b32 {SPN}, 0\ns_branch L_pollq")
    a(f"s_mov_b32 {SPN}, {SPIN}\nL_pollq:\ns_mov_b32 {T0}, {T3}")
    for rb in range(4):
        if rb: a(f"s_add_u32 {T0}, {T0}, 4096")
        for k in range(4): a(f"buffer_load_dwordx4 v[{WB+16*rb+4*k}:{WB+16*rb+4*k+3}], {vL16}, {sW}, {T0} offen offset:{1024*k} sc1")
    a(f"s_sub_u32 {SPN}, {SPN}, 1\ns_cbranch_scc1 L_pollq_done\ns_waitcnt vmcnt(0)")
    tagcheck([WB + 4 * k + 2 for k in range(16)], "v33")
    a("v_cmp_ne_u32 vcc, 0, v33\ns_cbranch_vccnz L_pollq\nL_pollq_done:\ns_waitcnt vmcnt(0)")
    stamp(4)
    for k in range(4):
        for e in range(2):
            r = WB + 4 * k + e
            a(f"v_add_f32 v{r}, v{r}, v{r+16}\nv_add_f32 v{r+32}, v{r+32}, v{r+48}\nv_add_f32 v{r}, v{r}, v{r+32}")
    a("v_lshrrev_b32 v34, 2, v0\nv_and_b32 v35, 3, v0\nv_lshlrev_b32 v34, 6, v34\nv_lshl_add_u32 v34, v35, 2, v34")
    for w in range(4): a(f"v_cvt_pk_bf16_f32 v{48+w}, v{WB+4*w}, v{WB+4*w+1}")
    for w in range(4): a(f"ds_write_b32 v34, v{48+w} offset:{QL+16*w}")
    a(f"s_waitcnt lgkmcnt(0)\ns_barrier\ns_setprio 0\ns_branch L_svc2")

    a(f"L_backlog:\ns_barrier\nds_read_b128 v[{vQ}:{vQ+3}], {vVO} offset:{QL}\ns_waitcnt lgkmcnt(0)")
    stamp(2)
    uid = [0]
    def k_mfma(sl):
        for sg in range(4): a(f"v_mfma_f32_16x16x32_bf16 v[{vD+4*sg}:{vD+4*sg+3}], {kreg(sl, sg)}, v[{vQ}:{vQ+3}], 0")
    def k_score():
        for k in range(3):
            for sg in range(4):
                d = vD + 4 * sg; u = [u for u in range(4) if u != sg][k]
                a(f"v_add_f32_dpp {vS if k == 2 else vT[sg]}, v{d+u}, {f'v{d+sg}' if k == 0 else vT[sg]} row_ror:{(4*(sg-u))%16} row_mask:0xf bank_mask:{hex(1<<sg)}")
        t = vT[0]
        a(f"v_cvt_pk_bf16_f32 {t}, {vS}, {vS}\nv_lshlrev_b32 {t}, 16, {t}\nv_mul_f32 {t}, {SCALE}, {t}\nv_cvt_pk_bf16_f32 {t}, {t}, {t}\nv_lshlrev_b32 {t}, 16, {t}")
    def k_keep(off): a(f"v_max_f32 {vM}, {vM}, {vT[0]}\nds_write_b32 {vSA}, {vT[0]} offset:{off}")
    def expo(src):
        t = vT[0]
        a(f"v_fma_f32 {t}, {src}, {LOG2E}, -{vML}\nv_exp_f32 {t}, {t}\nv_add_f32 {vL}, {vL}, {t}")
        a(f"v_mov_b32_dpp {vT[1]}, {t} row_ror:12 {FULL}\nv_cvt_pk_bf16_f32 v{vB}, {t}, {vT[1]}\nv_mov_b32_dpp v{vB+1}, v{vB} row_ror:8 {FULL}")
    def l_reduce():
        a(f"v_add_f32_dpp v19, {vL}, {vL} row_ror:4 {FULL}\nv_add_f32_dpp v19, v19, v19 row_ror:8 {FULL}")
        for sw in ("16", "32"):
            a(f"v_mov_b32 {vT[2]}, v19\nv_permlane{sw}_swap_b32 {vT[2]}, v19\nv_add_f32 v19, v19, {vT[2]}")
    def kpart(sl, last=False):
        k_mfma(sl); k_score(); uid[0] += 1
        a(f"v_cmp_gt_f32 vcc, {vT[0]}, {vM}\ns_cbranch_vccz L_nr{uid[0]}\ns_call_b64 {RET}, L_rescale\nL_nr{uid[0]}:")
        expo(vT[0])
        if last: l_reduce()
    def perms(slot, h):
        r0, r1 = vreg(slot, 2 * h), vreg(slot, 2 * h + 1); o = []
        for w in range(4):
            o.append(f"v_perm_b32 v{vA+2*(2*w)+h}, v{r1+w}, v{r0+w}, {SELL}")
            o.append(f"v_perm_b32 v{vA+2*(2*w+1)+h}, v{r1+w}, v{r0+w}, {SELH}")
        return o
    mf = [f"v_mfma_f32_16x16x16_bf16 v[{vOc+4*e}:{vOc+4*e+3}], v[{vA+2*e}:{vA+2*e+1}], v[{vB}:{vB+1}], v[{vOc+4*e}:{vOc+4*e+3}]" for e in range(8)]
    def pv(slot, h):
        p = perms(slot, h)
        if h == 0:
            for x in p: a(x)
        else:
            for k in range(8):
                a(p[k])
                if k >= 2: a(mf[k-2])
            a(mf[6]); a(mf[7])
    for t in range(S0):
        w = 4 * (st["m"] - t - 1)
        if w < 63: a(f"s_waitcnt vmcnt({w})")
        k_mfma(slot_of(t))
        due = P + ((t + 1) * (E + 2)) // S0
        while st["m"] < due and st["m"] - P <= t: issue_group()
        k_score(); k_keep(256 * t)
    assert st["m"] == S0 + 2
    stamp(3)
    if dbg: a("s_mov_b32 s93, 0\ns_mov_b32 s94, s98")
    a(f"v_add_u32 {vSA}, {256*S0}, {vSA}\ns_mov_b32 {CNT}, {(NK-2-S0)//2}\nL_kloop:")
    for rho in (0, 1):
        a("s_waitcnt vmcnt(4)"); dstamp()
        k_mfma(rho)
        a(f"s_add_u32 {CUR}, {CUR}, {TSTEP}")
        for i in range(4): issue(rho, i, CUR)
        k_score(); k_keep(256 * rho)
    a(f"v_add_u32 {vSA}, 512, {vSA}\ns_sub_u32 {CNT}, {CNT}, 1\ns_cmp_lg_u32 {CNT}, 0\ns_cbranch_scc1 L_kloop")
    for rho in (0, 1):
        a("s_waitcnt vmcnt(4)"); dstamp()
        a(f"s_mov_b32 {CUR}, {CUR0}" if rho == 0 else f"s_add_u32 {CUR}, {CUR}, {TSTEP}")
        for i in range(4, 8): issue(rho, i, CUR)
        k_mfma(rho); k_score(); k_keep(256 * rho)
    a(f"v_subrev_u32 {vSA}, {256*(NK-2)}, {vSA}\ns_waitcnt lgkmcnt(0)\nds_read_b32 v{vSR}, {vSA}")
    a(f"v_max_f32_dpp {vM}, {vM}, {vM} row_ror:4 {FULL}\nv_max_f32_dpp {vM}, {vM}, {vM} row_ror:8 {FULL}")
    for sw in ("16", "32"): a(f"v_mov_b32 {vT[2]}, {vM}\nv_permlane{sw}_swap_b32 {vT[2]}, {vM}\nv_max_f32 {vM}, {vM}, {vT[2]}")
    a(f"v_mul_f32 {vML}, {LOG2E}, {vM}")
    stamp(7)
    a(f"s_mov_b32 {CNT}, {NV//2}\nL_vloop:")
    for rho in (0, 1):
        a("s_waitcnt lgkmcnt(0)"); expo(f"v{vSR}")
        a(f"ds_read_b32 v{vSR}, {vSA} offset:{256*(rho+1)}\ns_waitcnt vmcnt(4)"); dstamp()
        for x in perms(rho, 0) + perms(rho, 1): a(x)
        a(f"s_add_u32 {CUR}, {CUR}, {TSTEP}")
        for i in range(4, 8): issue(rho, i, CUR)
        for x in mf: a(x)
    a(f"v_add_u32 {vSA}, 512, {vSA}\ns_sub_u32 {CNT}, {CNT}, 1\ns_cmp_lg_u32 {CNT}, 0\ns_cbranch_scc1 L_vloop")
    vW = vreg(2, 0)
    vN0, vN1, vA1, vA2, vA3, vA4, vA5, vA6, vXo, vX, vZ, vLW, vLM, vL8, vU0, vU1, vWo, vG1, vH1 = (f"v{r}" for r in range(138, 157))
    def wo_issue():
        for i in range(8):
            if i: a(f"s_add_u32 s89, s89, 16384")
            a(f"buffer_load_dwordx2 v[{vW+2*i}:{vW+2*i+1}], {vWo}, {sO}, s89 offen nt")
    def tail_prep():
        a(f"s_lshl_b32 {T0}, {H_}, 2\ns_lshr_b32 {T1}, {JR}, 3\ns_add_u32 {T0}, {T0}, {T1}\ns_lshl_b32 {T2}, {T0}, 3\ns_and_b32 {T1}, {JR}, 4\ns_add_u32 {T1}, {T1}, s3\ns_add_u32 {T2}, {T2}, {T1}")
        a(f"s_lshl_b32 {T0}, {T0}, 7\ns_add_u32 {T0}, {T0}, {T1}\ns_lshl_b32 {T0}, {T0}, 10\ns_and_b32 {T1}, {JR}, 3\ns_lshl_b32 {T3}, {T1}, 8\ns_add_u32 s89, {T0}, {T3}")
        a(f"v_lshrrev_b32 {vU0}, 5, v0\nv_and_b32 {vU1}, 31, v0\nv_lshlrev_b32 {vWo}, 13, {vU0}\nv_lshl_add_u32 {vWo}, {vU1}, 3, {vWo}")
        a(f"s_lshr_b32 s78, {T2}, 1\ns_lshl_b32 s78, s78, 12\ns_and_b32 {T0}, {T2}, 1\ns_lshl_b32 {T0}, {T0}, 6\ns_add_u32 s78, s78, {T0}\ns_add_u32 s78, s78, {H1}")
        a(f"s_lshl_b32 s80, {T1}, 16\ns_lshl_b32 {T0}, {H_}, 3\ns_add_u32 {T0}, {T0}, {X_}\ns_lshl_b32 {T0}, {T0}, 7\ns_add_u32 s80, s80, {T0}\ns_add_u32 s80, s80, {H2}")
        a(f"s_lshl_b32 s88, {A_}, 5\ns_lshl_b32 {T0}, {A_}, 13\ns_add_u32 s81, {T0}, {H2}\ns_add_u32 s87, {T0}, {GA}")
        a(f"s_lshl_b32 s76, {H_}, 16\ns_lshl_b32 {T0}, s3, 14\ns_add_u32 s76, s76, {T0}\ns_lshl_b32 {T0}, {J_}, 7\ns_add_u32 s76, s76, {T0}\ns_add_u32 s76, s76, {H1}")
        a("s_mov_b32 s82, 0xaaaaaaaa\ns_mov_b32 s83, 0xaaaaaaaa")
        a(f"v_mov_b32 {vZ}, 0\nds_read_b64 v[138:139], {vZ} offset:{NL}")
        a(f"s_lshl_b32 {T0}, s3, 9\nv_lshl_add_u32 {vA5}, {vU1}, 1, {vU0}\nv_lshl_add_u32 {vA5}, {vA5}, 3, {T0}\nv_lshlrev_b32 {vG1}, 4, {vU1}\nv_lshl_add_u32 {vG1}, {vU0}, 10, {vG1}")
        a(f"s_mul_i32 {T0}, s3, 528\nv_lshl_add_u32 {vA1}, {vU1}, 4, {T0}")
        a(f"v_and_b32 {vU1}, 7, v0\nv_lshl_add_u32 {vXo}, {vU1}, 1, {vU0}\nv_lshlrev_b32 {vXo}, 1, {vXo}\nv_lshrrev_b32 {vU0}, 3, v0\nv_lshlrev_b32 {vU1}, 4, {vU1}\nv_lshl_add_u32 {vA6}, {vU0}, 13, {vU1}\nv_lshl_add_u32 {vA3}, {vU0}, 12, {vU1}\nv_and_b32 {vU1}, 3, v0")
        a(f"v_lshrrev_b32 {vU0}, 2, v0\nv_lshlrev_b32 {vH1}, 7, {vU0}\nv_lshl_add_u32 {vH1}, {vU1}, 4, {vH1}")
        a(f"s_sub_u32 {T0}, s3, 1\ns_mul_i32 {T1}, {T0}, {OBS}\ns_lshl_b32 {T0}, {T0}, 5\ns_add_u32 {T0}, {T0}, {MLB}")
        a(f"v_lshl_add_u32 {vLM}, {vU1}, 3, {T0}\nv_mul_u32_u24 {vLW}, 528, {vU1}\nv_lshrrev_b32 {vU0}, 4, v0\nv_lshl_add_u32 {vLW}, {vU0}, 4, {vLW}\nv_add_u32 {vLW}, {T1}, {vLW}")
        a(f"v_lshlrev_b32 {vL8}, 3, v0\ns_lshl_b32 {T0}, s3, 3\nv_mov_b32 {vA2}, {T0}\nv_lshlrev_b32 {vA4}, 4, v0")
    def request():
        a(f"s_add_u32 {DD}, {DD}, 1\ns_and_b32 {QS}, {DD}, 3\ns_cmp_eq_u32 {ATT}, 0\ns_cselect_b32 {QS}, {SUB}, {QS}\ns_lshl_b32 {T0}, {QS}, 13\ns_mov_b32 {TKT}, 1\ns_atomic_add {TKT}, {CTR}, {T0} glc")
    def recheck(name):
        a(f"s_cmp_eq_u32 {QS}, {SUB}\ns_cbranch_scc1 {name}\ns_waitcnt lgkmcnt(0)\ns_cmp_lt_u32 {TKT}, {1024-TB}\ns_cbranch_scc1 {name}\ns_mov_b32 {ATT}, 0")
        request()
        a(f"{name}:")
    def take(name, miss):
        a(f"s_waitcnt lgkmcnt(0)\ns_add_u32 {T0}, {TKT}, {TB}\ns_cmp_lt_u32 {T0}, {1024-THR}\ns_cbranch_scc1 {name}\nds_write_b32 v18, v18\ns_waitcnt lgkmcnt(0)\ns_cmp_ge_u32 {T0}, 1024\ns_cbranch_scc1 {miss}\n{name}:")
        a(f"s_cmp_ge_u32 {T0}, {1024-THH}\ns_cselect_b32 {ATT}, 0, {ATT}")
        a(f"s_and_b32 {T1}, {T0}, 1\ns_lshr_b32 {T0}, {T0}, 1\ns_lshl_b32 {T1}, {T1}, 9\ns_add_u32 {T0}, {T0}, {T1}\ns_lshl_b32 {T0}, {T0}, 12\ns_lshl_b32 {T1}, {QS}, 22\ns_add_u32 {T0}, {T0}, {T1}\ns_add_u32 {CUR}, {HB}, {T0}")
    def ml_write():
        a(f"s_mov_b32 exec_lo, 0x000f000f\ns_mov_b32 exec_hi, 0x000f000f\nds_write2_b32 {vLM}, {vML}, v19 offset0:0 offset1:1\ns_mov_b64 exec, -1")
    for k in range(1, R): a(f"ds_read_b32 v{vSR+k}, {vSA} offset:{256*k}")
    a("s_waitcnt lgkmcnt(0)")
    request()
    rho0 = (NK - 1) % 2
    for k in range(R):
        t = NV + k; rho = t % 2
        expo(f"v{vSR+k}")
        a("s_waitcnt vmcnt(4)")
        for x in perms(rho, 0) + perms(rho, 1): a(x)
        if k < R - 2:
            a(f"s_add_u32 {CUR}, {CUR}, {TSTEP}")
            for i in range(4, 8): issue(rho, i, CUR)
        elif k == R - 2:
            take("L_tk0", "L_nodyn")
            for i in range(4): issue(rho0, i, CUR)
            request()
        else:
            for i in range(4, 8): issue(rho0, i, CUR)
        for x in mf: a(x)
        if k == R - 3: recheck("L_rc0")
        if k == R - 1: recheck("L_rc1")
    if dbg: a("s_mov_b32 s93, 17")
    if rho0 == 1: a("s_branch L_loop1")
    for rho in (0, 1):
        a(f"L_loop{rho}:\ns_waitcnt vmcnt(4)")
        if dbg: a(f"s_memrealtime s[94:95]\ns_waitcnt lgkmcnt(0)\ns_mov_b32 m0, s93\ns_add_u32 s93, s93, 1\nv_writelane_b32 {VDBG}, s94, m0")
        take(f"L_tk{rho+1}", f"L_drain{rho}")
        for i in range(4): issue(1 - rho, i, CUR)
        request()
        kpart(rho)
        a("s_waitcnt vmcnt(4)")
        for i in range(4, 8): issue(1 - rho, i, CUR)
        recheck(f"L_nck{rho}")
        pv(rho, 0); pv(rho, 1)
    a("s_branch L_loop0")
    a("L_nodyn:")
    stamp(4)
    for x in mf: a(x)
    tail_prep()
    expo(f"v{vSR+R-1}"); l_reduce(); ml_write()
    a("s_waitcnt vmcnt(2)"); pv(rho0, 0)
    a("s_waitcnt vmcnt(0)"); pv(rho0, 1)
    a("s_branch L_fin")
    for rho in (0, 1):
        a(f"L_drain{rho}:")
        stamp(4)
        tail_prep()
        kpart(rho, last=True)
        ml_write()
        a("s_waitcnt vmcnt(2)"); pv(rho, 0)
        a("s_waitcnt vmcnt(0)"); pv(rho, 1)
        if rho == 0: a("s_branch L_fin")
    a("L_fin:\ns_mov_b32 exec_lo, 0x000f000f\ns_mov_b32 exec_hi, 0x000f000f")
    for e in range(8): a(f"ds_write_b128 {vLW}, v[{vOc+4*e}:{vOc+4*e+3}] offset:{OB+64*e}")
    a("s_mov_b64 exec, -1")
    wo_issue()
    a("s_branch L_tail")
    a("L_rescale:")
    t = vT[0]; u_, w_ = vT[1], vT[2]
    a(f"v_max_f32 {u_}, {t}, {vM}\nv_max_f32_dpp {u_}, {u_}, {u_} row_ror:4 {FULL}\nv_max_f32_dpp {u_}, {u_}, {u_} row_ror:8 {FULL}")
    for sw in ("16", "32"):
        a(f"v_mov_b32 {w_}, {u_}\nv_permlane{sw}_swap_b32 {w_}, {u_}\nv_max_f32 {u_}, {u_}, {w_}")
    a(f"v_mov_b32 {vM}, {u_}\nv_mul_f32 {u_}, {LOG2E}, {u_}\nv_sub_f32 {w_}, {vML}, {u_}\nv_exp_f32 {w_}, {w_}\nv_mov_b32 {vML}, {u_}\nv_mul_f32 {vL}, {vL}, {w_}")
    for r in range(0, 32, 2): a(f"v_pk_mul_f32 v[{vOc+r}:{vOc+r+1}], v[{vOc+r}:{vOc+r+1}], v[14:15] op_sel_hi:[1,0]")
    a(f"s_setpc_b64 {RET}")

    a("L_svc2:")
    stamp(5)
    tail_prep()
    a(f"v_mul_u32_u24 v6, {8*3584}, {vr}\nv_lshl_add_u32 v6, {vc}, 4, v6\ns_mul_i32 s28, {X_}, {64*3584}\ns_lshl_b32 {T1}, {A_}, 7\ns_add_u32 s28, s28, {T1}")
    a(f"s_lshl_b32 {T1}, {X_}, 7\nv_lshl_add_u32 v7, {vr}, 4, {T1}\nds_read_b128 v[24:27], v7 offset:{XN}\nv_lshlrev_b32 v23, 4, v22\nv_lshlrev_b32 v7, 2, v0")
    a(f"s_lshl_b32 s29, {A_}, 13\ns_add_u32 s29, s29, {GP1}\ns_lshl_b32 {T1}, {X_}, 10\ns_add_u32 s30, s29, {T1}")
    a(f"s_lshr_b32 {T1}, {X_}, 2\ns_lshl_b32 {T2}, {T1}, 9\ns_add_u32 s29, s29, {T2}\ns_lshl_b32 {T2}, {A_}, 1\ns_add_u32 {T2}, {T2}, {T1}")
    a(f"s_and_b32 {T1}, {X_}, 3\ns_lshl_b32 s31, {T2}, 15\ns_lshl_b32 {T3}, {T1}, 8\ns_add_u32 s31, s31, {T3}\ns_lshl_b32 s61, {T1}, 16\ns_lshl_b32 {T2}, {T2}, 7\ns_add_u32 s61, s61, {T2}\ns_add_u32 s61, s61, {GA}")
    W2R, W2P = 160, 192
    a(f"s_cmp_ge_u32 {A_}, 28\ns_cbranch_scc1 L_noglu1")
    def g1_issue(k):
        b = WB + 16 * k
        if k: a(f"s_add_u32 s28, s28, 7168")
        a(f"buffer_load_dwordx4 v[{b}:{b+3}], v6, {s1}, s28 offen nt\nbuffer_load_dwordx4 v[{b+4}:{b+7}], v6, {s1}, s28 offen offset:3584 nt")
        a(f"buffer_load_dwordx4 v[{b+8}:{b+11}], v6, {s3_}, s28 offen nt\nbuffer_load_dwordx4 v[{b+12}:{b+15}], v6, {s3_}, s28 offen offset:3584 nt")
    for k in range(gth): g1_issue(k)
    for k in range(4):
        b = WB + 16 * k
        a(f"s_waitcnt vmcnt({4*(min(k+gth,4)-k-1)}) lgkmcnt(0)")
        if k + gth < 4: g1_issue(k + gth)
        pairdot(b, b + 4, f"v{24+k}", ACC, k == 0); pairdot(b + 8, b + 12, f"v{24+k}", ACC + 8, k == 0)
    redscat8(ACC, "v56"); redscat8(ACC + 8, "v57")
    a("L_noglu1:")
    if pre and prewhen == 1: pretouch()
    stamp(6)
    wait_lds("L_wtrg", TRG, tsleep, SPIN * 8)
    stamp(7)
    if pre and prewhen == 2: pretouch()
    a(f"s_cmp_ge_u32 {A_}, 28\ns_cbranch_scc1 L_noglu2")
    a(f"buffer_store_dwordx4 v[56:59], v23, {sW}, s30 offen sc1\ns_add_u32 s30, s29, 4096\ns_mov_b32 {SPN}, {SPIN}")
    def w2_loads():
        for i in range(32):
            if i and i % 4 == 0: a(f"s_add_u32 s31, s31, 4096")
            a(f"buffer_load_dword v{W2R+i}, v7, {s2_}, s31 offen offset:{1024*(i%4)} nt")
    def w2_perm():
        for k in range(16): a(f"v_perm_b32 v{W2P+2*k}, v{W2R+2*k+1}, v{W2R+2*k}, {SELL}\nv_perm_b32 v{W2P+2*k+1}, v{W2R+2*k+1}, v{W2R+2*k}, {SELH}")
    def w2_dot():
        for k in range(16):
            for c in range(2): a(f"v_dot2c_f32_bf16_dpp v{96+2*(k&1)+c}, v{88+(k>>3)}, v{W2P+2*k+c} row_newbcast:{2*(k&7)} {FULL}")
        a(f"v_add_f32 v100, v96, v98\nv_add_f32 v101, v97, v99")
    if not w2late: w2_loads()
    if THR2:
        wait_lds("L_wtr2", TR2, 1, SPIN * 8)
        a(f"s_mov_b32 {SPN}, {SPIN}")
    a(f"v_mov_b32 v96, 0\nv_mov_b32 v97, 0\nv_mov_b32 v98, 0\nv_mov_b32 v99, 0\nv_mov_b32 v102, {vN0}\nv_mov_b32 v103, {vN1}\nL_pollh:")
    for i in range(4): a(f"buffer_load_dwordx4 v[{72+4*i}:{75+4*i}], {vG1}, {sW}, {('s29','s30')[i>>1]} offen offset:{2048*(i&1)} sc1")
    a(f"s_sub_u32 {SPN}, {SPN}, 1\ns_cbranch_scc1 L_pollh_done\ns_waitcnt vmcnt(0)")
    tagcheck([74, 78, 82, 86], "v88")
    a("v_cmp_ne_u32 vcc, 0, v88\ns_cbranch_vccnz L_pollh\nL_pollh_done:\ns_waitcnt vmcnt(0)")
    if not w2late: w2_perm()
    a("v_add_f32 v88, v72, v76\nv_add_f32 v89, v73, v77\nv_add_f32 v90, v80, v84\nv_add_f32 v91, v81, v85")
    a("v_add_f32 v88, v88, v90\nv_add_f32 v89, v89, v91\nv_permlane32_swap_b32 v88, v89\nv_add_f32 v89, v88, v89\nv_mov_b32 v88, v89\nv_permlane32_swap_b32 v88, v89")
    bfr("v88"); bfr("v89"); silu_bf("v88", "v90")
    a(f"v_mul_f32 v88, v88, v89\nv_mov_b32_dpp v89, v88 quad_perm:[1,1,3,3] {FULL}\nv_cvt_pk_bf16_f32 v89, v88, v89\nv_mov_b32 v88, v89\nv_permlane16_swap_b32 v88, v89")
    if not w2late: w2_dot()
    a("L_noglu2:")
    if not w2late: wo_issue()
    stamp(3)
    a("L_tail:")
    a(f"s_waitcnt lgkmcnt(0)\nv_mov_b32 v39, {vN0}\ns_barrier")
    stamp(8)
    for s_ in range(3): a(f"ds_read_b64 v[{20+2*s_}:{21+2*s_}], {vA2} offset:{MLB+32*s_}")
    for s_ in range(3): a(f"ds_read_b128 v[{72+4*s_}:{75+4*s_}], {vA1} offset:{OB+OBS*s_}")
    a("s_waitcnt lgkmcnt(3)\nv_max3_f32 v32, v20, v22, v24")
    for s_ in range(3): a(f"v_sub_f32 v{20+2*s_}, v{20+2*s_}, v32")
    for s_ in range(3): a(f"v_exp_f32 v{20+2*s_}, v{20+2*s_}")
    a("v_mul_f32 v33, v21, v20\nv_fmac_f32 v33, v23, v22\nv_fmac_f32 v33, v25, v24\ns_mov_b32 exec_hi, 0")
    a("s_waitcnt lgkmcnt(1)")
    for i in range(4): a(f"v_mul_f32 v{72+i}, v{72+i}, v20")
    for i in range(4): a(f"v_fmac_f32 v{72+i}, v{76+i}, v22")
    a("v_cndmask_b32 v38, v32, v33, s[82:83]\ns_waitcnt lgkmcnt(0)")
    for i in range(4): a(f"v_fmac_f32 v{72+i}, v{80+i}, v24")
    a("v_cvt_pk_bf16_f32 v36, v72, v73\nv_cvt_pk_bf16_f32 v37, v74, v75")
    a(f"buffer_store_dwordx4 v[36:39], {vA3}, {sW}, s76 offen sc1\ns_mov_b64 exec, -1")
    stamp(9)
    def h1_load(i): a(f"buffer_load_dwordx4 v[{20+4*i}:{23+4*i}], {vH1}, {sW}, s78 offen offset:{2048*i} sc1")
    PW = 52
    def wo_perm():
        for i in range(8): a(f"v_permlane32_swap_b32 v{vW+2*i}, v{vW+2*i+1}")
        for i in range(8): a(f"v_perm_b32 v{PW+2*i}, v{vW+2*i+1}, v{vW+2*i}, {SELL}\nv_perm_b32 v{PW+2*i+1}, v{vW+2*i+1}, v{vW+2*i}, {SELH}")
    a(f"s_mov_b32 {SPN}, {SPIN}\nv_mov_b32 v44, 0\nv_mov_b32 v45, 0\nv_mov_b32 v46, 0\nv_mov_b32 v47, 0\nv_mov_b32 v70, {vN0}\nv_mov_b32 v71, {vN1}")
    if w2late:
        a(f"s_cmp_lg_u32 s3, 0\ns_cbranch_scc1 L_wop")
        wo_issue()
        a(f"s_cmp_ge_u32 {A_}, 28\ns_cbranch_scc1 L_wop0")
        w2_loads()
        a("s_waitcnt vmcnt(32)"); wo_perm()
        for i in range(2): h1_load(i)
        a("s_waitcnt vmcnt(2)"); w2_perm(); w2_dot()
        a(f"buffer_store_dwordx4 v[100:103], {vA6}, {sW}, s61 offen sc1\ns_waitcnt vmcnt(1)\ns_branch L_poll1c")
        a("L_wop0:\ns_waitcnt vmcnt(0)\nL_wop:")
    a("s_waitcnt vmcnt(1)")
    wo_perm()
    if h1s > 1: a(f"s_sleep {h1s}")
    for i in range(2): h1_load(i)
    if not w2late:
        a(f"s_cmp_lg_u32 s3, 0\ns_cbranch_scc1 L_poll1\ns_cmp_ge_u32 {A_}, 28\ns_cbranch_scc1 L_poll1")
        a(f"buffer_store_dwordx4 v[100:103], {vA6}, {sW}, s61 offen sc1\ns_waitcnt vmcnt(1)\ns_branch L_poll1c")
    def repoll(name, loadf, n):
        a(f"s_or_b64 s[66:67], {CM[0]}, {CM[1]}")
        for i in range(2, n): a(f"s_or_b64 s[66:67], s[66:67], {CM[i]}")
        a(f"s_cbranch_scc0 {name}_done")
        a(f"s_sub_u32 {SPN}, {SPN}, 1\ns_cbranch_scc1 {name}_done")
        for i in range(n):
            a(f"s_cmp_eq_u64 {CM[i]}, 0\ns_cbranch_scc1 {name}_s{i}")
            loadf(i)
            a(f"{name}_s{i}:")
        a(f"s_branch {name}\n{name}_done:")
    a("L_poll1:\ns_waitcnt vmcnt(0)\nL_poll1c:")
    for i in range(2): a(f"v_cmp_ne_u32 {CM[i]}, v{23+4*i}, {vN0}")
    for i in range(2): a(f"v_mov_b32_dpp v{36+i}, v{22+4*i} quad_perm:[0,0,2,2] {FULL}")
    a("v_lshlrev_b32 v28, 16, v20\nv_max_f32 v41, v36, v37\nv_and_b32 v29, 0xffff0000, v20\nv_lshlrev_b32 v30, 16, v21")
    repoll("L_poll1", h1_load, 2)
    stamp(10)
    a(f"v_max_f32_dpp v41, v41, v41 row_ror:4 {FULL}\nv_and_b32 v31, 0xffff0000, v21\nv_lshlrev_b32 v32, 16, v24\nv_max_f32_dpp v41, v41, v41 row_ror:8 {FULL}")
    a("v_mov_b32 v42, v41\nv_and_b32 v33, 0xffff0000, v24\nv_lshlrev_b32 v34, 16, v25\nv_permlane16_swap_b32 v42, v41\nv_max_f32 v41, v41, v42")
    a("v_mov_b32 v42, v41\nv_and_b32 v35, 0xffff0000, v25\ns_nop 0\nv_permlane32_swap_b32 v42, v41\nv_max_f32 v41, v41, v42")
    a("v_sub_f32 v36, v36, v41\nv_sub_f32 v37, v37, v41\nv_exp_f32 v36, v36\nv_exp_f32 v37, v37")
    for r in (28, 29, 30, 31, 22): a(f"v_mul_f32 v{r}, v{r}, v36")
    for r in (28, 29, 30, 31, 22): a(f"v_fmac_f32 v{r}, v{r+4}, v37")
    a("v_permlane32_swap_b32 v28, v29\nv_mov_b32 v26, v22\nv_permlane32_swap_b32 v30, v31\nv_add_f32 v28, v28, v29\nv_permlane32_swap_b32 v26, v22\nv_add_f32 v30, v30, v31\nv_add_f32 v22, v22, v26")
    a("v_mov_b32 v26, v22\nv_permlane16_swap_b32 v28, v30\nv_add_f32 v28, v28, v30\nv_permlane16_swap_b32 v26, v22\nv_add_f32 v22, v22, v26")
    for n in (4, 8): a(f"v_add_f32_dpp v28, v28, v28 row_ror:{n} {FULL}\nv_add_f32_dpp v22, v22, v22 row_ror:{n} {FULL}")
    a(f"v_rcp_f32_dpp v22, v22 quad_perm:[1,1,3,3] {FULL}\nv_mul_f32 v28, v28, v22\nv_mov_b32 v29, v28\nv_permlane32_swap_b32 v29, v28\nv_cvt_pk_bf16_f32 v28, v29, v28\nv_mov_b32 v29, v28\nv_permlane16_swap_b32 v29, v28")
    for k in range(8):
        for c in range(2): a(f"v_dot2c_f32_bf16_dpp v{44+2*(k&1)+c}, v{29-(k&1)}, v{PW+2*k+c} row_newbcast:{k>>1} {FULL}")
    a(f"v_add_f32 v44, v44, v46\nv_add_f32 v45, v45, v47\nds_write_b64 {vA5}, v[44:45] offset:{SX}\ns_waitcnt lgkmcnt(0)\ns_barrier")
    a("s_cmp_lg_u32 s3, 0\ns_cbranch_scc1 L_notpub")
    for w in range(4): a(f"ds_read_b64 v[{20+2*w}:{21+2*w}], {vL8} offset:{SX+512*w}")
    a("s_waitcnt lgkmcnt(2)\nv_add_f32 v20, v20, v22\nv_add_f32 v21, v21, v23\ns_waitcnt lgkmcnt(0)\nv_add_f32 v24, v24, v26\nv_add_f32 v25, v25, v27\nv_add_f32 v68, v20, v24\nv_add_f32 v69, v21, v25")
    a(f"buffer_store_dwordx4 v[68:71], {vA6}, {sW}, s80 offen sc1")
    stamp(11)
    a("s_branch L_done\nL_notpub:")
    a(f"s_cmp_lg_u32 s3, 1\ns_cbranch_scc1 L_done\ns_cmp_eq_u32 {FIN}, -1\ns_cbranch_scc1 L_done")
    def red2(c, tmp):
        a(f"v_permlane32_swap_b32 v{c}, v{c+1}\nv_add_f32 v{c}, v{c}, v{c+1}\nv_mov_b32 {tmp}, v{c}\nv_permlane16_swap_b32 {tmp}, v{c}\nv_add_f32 v{c}, v{c}, {tmp}")
        a(f"v_add_f32_dpp v{c}, v{c}, v{c} row_ror:8 {FULL}")
    def g_load(i): a(f"buffer_load_dwordx4 v[{72+4*i}:{75+4*i}], {vA4}, {sW}, {('s87','s79')[i>>2]} offen offset:{1024*(i&3)} sc1")
    def h2_load(i): a(f"buffer_load_dwordx4 v[{20+4*i}:{23+4*i}], {vA4}, {sW}, {('s81','s75')[i>>2]} offen offset:{1024*(i&3)} sc1")
    def tree(base, n, d0, d1):
        for e, d in ((0, d0), (1, d1)):
            a(f"v_add_f32 {d}, v{base+e}, v{base+4+e}\nv_add_f32 v104, v{base+8+e}, v{base+12+e}\nv_add_f32 v105, v{base+16+e}, v{base+20+e}\nv_add_f32 {d}, {d}, v104\nv_add_f32 v105, v105, v{base+24+e}")
            if n == 8: a(f"v_add_f32 {d}, {d}, v{base+28+e}")
            a(f"v_add_f32 {d}, {d}, v105")
    a(f"s_mov_b32 {SPN}, {SPIN}\ns_add_u32 s79, s87, 4096\ns_add_u32 s75, s81, 4096\nbuffer_load_ushort {vX}, {vXo}, {sX}, s88 offen")
    for i in range(7): g_load(i)
    a("L_pollg:\ns_waitcnt vmcnt(0)")
    for i in range(7): a(f"v_cmp_ne_u64 {CM[i]}, v[{74+4*i}:{75+4*i}], v[138:139]")
    repoll("L_pollg", g_load, 7)
    a(f"s_cmp_lg_u32 {FIN}, 0\ns_cbranch_scc1 L_nonon\ns_mov_b32 {T0}, {NON}\ns_mov_b64 exec, 1\nbuffer_store_dwordx2 v[138:139], {vZ}, {sW}, {T0} offen sc1\ns_mov_b64 exec, -1\nL_nonon:")
    tree(72, 7, "v106", "v107")
    red2(106, "v104")
    bfr("v106"); silu_bf("v106", "v107"); a(f"v_lshlrev_b32 {vX}, 16, {vX}")
    for i in range(8): h2_load(i)
    stamp(15)
    a(f"s_mov_b32 {SPN}, {SPIN}\nL_poll2:\ns_waitcnt vmcnt(0)")
    for i in range(8): a(f"v_cmp_ne_u64 {CM[i]}, v[{22+4*i}:{23+4*i}], v[138:139]")
    tree(20, 8, "v108", "v109")
    repoll("L_poll2", h2_load, 8)
    stamp(12)
    red2(108, "v104")
    bfr("v108"); a("v_mul_f32 v108, v108, v106"); bfr("v108"); a(f"v_add_f32 v108, v108, {vX}\nv_cvt_pk_bf16_f32 v108, v108, v108")
    a(f"s_mov_b32 exec_lo, 0xff\ns_mov_b32 exec_hi, 0xff\nbuffer_store_short v108, {vXo}, {sY}, s88 offen {outsc}\ns_mov_b64 exec, -1")
    a("L_done:")
    if dbg:
        stamp(13)
        a("s_getreg_b32 s98, hwreg(HW_REG_XCC_ID)")
        a(f"v_writelane_b32 {VDBG}, s98, 14")
        a(f"s_lshl_b32 {T0}, s2, 2\ns_add_u32 {T0}, {T0}, s3\ns_lshl_b32 {T0}, {T0}, 8\ns_add_u32 {T0}, {T0}, {DBG}\ns_sub_u32 s16, s16, {wsb}\ns_subb_u32 s17, s17, 0\nv_lshlrev_b32 v12, 2, v0\nbuffer_store_dword {VDBG}, v12, {sW}, {T0} offen\ns_add_u32 {T0}, {T0}, 0x40000\nbuffer_store_dword v246, v12, {sW}, {T0} offen")
    a("L_end:\ns_endpgm")
    a.pad()
    a('.section .rodata,"a"\n.p2align 6')
    a(f".amdhsa_kernel {KN}_kernel")
    a("""  .amdhsa_next_free_vgpr 512
  .amdhsa_next_free_sgpr 102
  .amdhsa_accum_offset 256
  .amdhsa_group_segment_fixed_size 0
  .amdhsa_kernarg_size 96
  .amdhsa_user_sgpr_count 2
  .amdhsa_user_sgpr_kernarg_segment_ptr 1
  .amdhsa_system_sgpr_workgroup_id_x 1
  .amdhsa_float_denorm_mode_32 3
.end_amdhsa_kernel""")
    return a.text()
if __name__ == "__main__":
    kw = eval("dict(%s)" % (sys.argv[2] if len(sys.argv) > 2 else ""))
    open(sys.argv[1], "w").write(gen(**kw))
```
